```python
import torch

def _softmax(x, axis=-1):
    return torch.softmax(x, dim=axis)

def _gelu(x):
    return torch.nn.functional.gelu(x, approximate='tanh')

def _silu(x):
    return torch.nn.functional.silu(x)

def _sigmoid(x):
    return torch.sigmoid(x)

def _layernorm(x, axis=-1, eps=1e-05):
    m = x.mean(dim=axis, keepdim=True)
    v = x.var(dim=axis, keepdim=True, unbiased=False)
    return (x - m) / torch.sqrt(v + eps)

def _scatter_add(tgt, idx, src, axis=0):
    return tgt.clone().index_add_(axis, idx, src)

def _segment_sum(src, seg, n):
    out = torch.zeros((n,) + src.shape[1:], dtype=src.dtype)
    return out.index_add_(0, seg, src)

def _pad(x, pw):
    flat = tuple((v for pair in reversed(pw) for v in pair))
    return torch.nn.functional.pad(x, flat)
kernel_name = 'adaLN_cond__ssm_conv_s4__glu_gated_swiglu__prompt'

def setup_inputs():

    _w = lambda a: (lambda t: t.to(torch.bfloat16) if t.is_floating_point() else t)(torch.as_tensor(a))

    def _A_setup():
        B, L, D, N = (1, 2048, 640, 128)
        A_re = -(lambda _x: torch.exp(torch.as_tensor(_x)))((lambda *s: torch.randn(*s, dtype=torch.bfloat16) * 3.2)(D, N))
        A_im = torch.pi * (lambda *s: torch.randn(*s, dtype=torch.bfloat16) * 0.05)(D, N)
        B_re = (lambda *s: torch.randn(*s, dtype=torch.bfloat16) * 0.1)(D, N)
        B_im = (lambda *s: torch.randn(*s, dtype=torch.bfloat16) * 0.1)(D, N)
        C_re = (lambda *s: torch.randn(*s, dtype=torch.bfloat16) * 0.1)(D, N)
        C_im = (lambda *s: torch.randn(*s, dtype=torch.bfloat16) * 0.1)(D, N)
        log_dt = (lambda *s: torch.randn(*s, dtype=torch.bfloat16) * 0.05)(D) * 0.5 - 4.0
        Dskip = (lambda *s: torch.randn(*s, dtype=torch.bfloat16) * 0.05)(D)
        return {'u': _w((lambda *s: torch.randn(*s, dtype=torch.bfloat16) * 0.05)(B, L, D)), 'A_re': _w(A_re), 'A_im': _w(A_im), 'B_re': _w(B_re), 'B_im': _w(B_im), 'C_re': _w(C_re), 'C_im': _w(C_im), 'log_dt': _w(log_dt), 'Dskip': _w(Dskip)}
    _A_in = _A_setup()

    def _B_setup():
        B, S, D, F = (1, 2048, 640, 1728)
        return {'x': _w((lambda *s: torch.randn(*s, dtype=torch.bfloat16) * 0.05)(B, S, D)), 'w1': _w((lambda *s: torch.randn(*s, dtype=torch.bfloat16) * 0.4)(D, F) * (2.0 / D) ** 0.5), 'w3': _w((lambda *s: torch.randn(*s, dtype=torch.bfloat16) * 0.4)(D, F) * (2.0 / D) ** 0.5), 'w2': _w((lambda *s: torch.randn(*s, dtype=torch.bfloat16) * 0.4)(F, D) * (2.0 / F) ** 0.5)}
    _B_in = _B_setup()
    return {'A_u': _A_in['u'], 'A_A_re': _A_in['A_re'], 'A_A_im': _A_in['A_im'], 'A_B_re': _A_in['B_re'], 'A_B_im': _A_in['B_im'], 'A_C_re': _A_in['C_re'], 'A_C_im': _A_in['C_im'], 'A_log_dt': _A_in['log_dt'], 'A_Dskip': _A_in['Dskip'], 'B_x': _B_in['x'], 'B_w1': _B_in['w1'], 'B_w3': _B_in['w3'], 'B_w2': _B_in['w2'], 'c': _w((lambda *s: torch.randn(*s, dtype=torch.bfloat16) * 0.2)(1, 640) * 8.0), 'w_mod': _w((lambda *s: torch.randn(*s, dtype=torch.bfloat16) * 0.2)(640, 6 * 640) * 640 ** (-0.5) * 8.0)}

def reference(A_u, A_A_re, A_A_im, A_B_re, A_B_im, A_C_re, A_C_im, A_log_dt, A_Dskip, B_x, B_w1, B_w3, B_w2, c, w_mod):

    def _A_ref(u, A_re, A_im, B_re, B_im, C_re, C_im, log_dt, Dskip):
        Bsz, L, D = u.shape
        dt = torch.exp(log_dt)[:, None]
        A = A_re + 1j * A_im
        Bc = B_re + 1j * B_im
        Cc = C_re + 1j * C_im
        logdA = dt * A
        dB = dt * Bc
        l = (lambda x, dt: x.to(dt))(torch.arange(L), A_re.dtype)
        P = torch.exp(logdA[:, :, None] * l[None, None, :])
        K = torch.einsum('dn,dnl,dn->dl', Cc, P, dB).real
        L2 = 2 * L
        Kp = _pad(K, ((0, 0), (0, L)))
        up = (lambda x, *d: x.permute(*d))(u, 0, 2, 1)
        up = _pad(up, ((0, 0), (0, 0), (0, L)))
        Kf = (lambda x, axes=(-2, -1): torch.fft.rfft2(x.float(), dim=axes))(Kp[:, None, :], axes=(-2, -1))
        Uf = (lambda x, axes=(-2, -1): torch.fft.rfft2(x.float(), dim=axes))(up[:, :, None, :], axes=(-2, -1))
        Yf = Uf * Kf[None, :, :, :]
        y = (lambda x, s, axes=(-2, -1): torch.fft.irfft2(x, s=s, dim=axes).to(torch.bfloat16))(Yf, (1, L2), axes=(-2, -1))[:, :, 0, :L]
        y = (lambda x, *d: x.permute(*d))(y, 0, 2, 1) + u * Dskip[None, None, :]
        return y

    def _B_ref(x, w1, w3, w2):
        gate = torch.einsum('bsd,df->bsf', x, w1)
        up = torch.einsum('bsd,df->bsf', x, w3)
        h = _silu(gate) * up
        out = torch.einsum('bsf,fd->bsd', h, w2)
        return out
    x = A_u
    mod = (_silu(c) @ w_mod).reshape(c.shape[0], 6, 1, -1)
    sa, ca, ga, sb, cb, gb = (mod[:, 0].clone(), mod[:, 1].clone(), mod[:, 2].clone(), mod[:, 3].clone(), mod[:, 4].clone(), mod[:, 5].clone())
    h = _layernorm(x, axis=-1) * (1 + ca) + sa
    x = x + ga * _A_ref(h, A_A_re, A_A_im, A_B_re, A_B_im, A_C_re, A_C_im, A_log_dt, A_Dskip)
    h = _layernorm(x, axis=-1) * (1 + cb) + sb
    x = x + gb * _B_ref(h, B_w1, B_w3, B_w2)
    return x
```

```python
class K:
    def __init__(self, name):
        self.name = name
        self.lines = []
        self.nlabel = 0
    def __call__(self, s):
        for ln in s.strip('\n').split('\n'):
            self.lines.append('    ' + ln.strip())
    def label(self, base='L'):
        self.nlabel += 1
        return f'.{self.name}_{base}{self.nlabel}'
    def put(self, lab):
        self.lines.append(lab + ':')
    def srd(self, sd, sbase, size, off=0):
        if off:
            self(f's_add_u32 s{sd}, s{sbase}, {off}')
            self(f's_addc_u32 s{sd+1}, s{sbase+1}, 0')
        else:
            self(f's_mov_b32 s{sd}, s{sbase}')
            self(f's_mov_b32 s{sd+1}, s{sbase+1}')
        self(f's_mov_b32 s{sd+2}, {size}')
        self(f's_mov_b32 s{sd+3}, 0x00020000')
    def text(self, vgpr, sgpr=102, accum=None):
        if accum is None:
            accum = (vgpr + 3) // 4 * 4
            total = vgpr
        else:
            total = vgpr
        body = '\n'.join(self.lines)
        return f'''.globl {self.name}
.p2align 8
.type {self.name},@function
{self.name}:
{body}
''', f'''.amdhsa_kernel {self.name}
  .amdhsa_next_free_vgpr {total}
  .amdhsa_next_free_sgpr {sgpr}
  .amdhsa_accum_offset {accum}
  .amdhsa_group_segment_fixed_size 0
  .amdhsa_kernarg_size 144
  .amdhsa_user_sgpr_count 2
  .amdhsa_user_sgpr_kernarg_segment_ptr 1
  .amdhsa_system_sgpr_workgroup_id_x 1
.end_amdhsa_kernel
'''

KA = dict(u=0, A_re=8, A_im=16, B_re=24, B_im=32, C_re=40, C_im=48, log_dt=56, Dskip=64, B_x=72,
          w1=80, w3=88, w2=96, c=104, w_mod=112, out=120, dbg=128, ws=136)
WS_MOD = 0
WS_K = 0x10000
WS_HT = 0x300000
WS_YT = 0x600000
WS_X1 = 0x900000
WS_H2 = 0xC00000
WS_ACT = 0x1000000
WS_SIZE = 268435456
LOG2E = 0x3fb8aa3b
INV2PI = 0x3e22f983
```

```python
from common import *

def gen_conv():
    k = K('conv_kernel')
    CS = 4160
    HOFF = 8 * CS
    k('''
    s_cmp_ge_u32 s2, 640
    s_cbranch_scc1 .conv_done
    s_load_dwordx2 s[6:7], s[0:1], 136
    v_lshrrev_b32 v1, 6, v0
    s_nop 0
    v_readfirstlane_b32 s23, v1
    s_waitcnt lgkmcnt(0)
    s_lshl_b32 s8, s2, 12
    s_add_u32 s9, s8, %d
    s_add_u32 s10, s8, %d
    v_lshlrev_b32 v1, 4, v0              ; 16t
    v_add_u32 v2, s9, v1
    v_add_u32 v3, s10, v1
    global_load_dwordx4 v[12:15], v2, s[6:7]            ; K[8t..8t+7]
    global_load_dwordx4 v[16:19], v3, s[6:7]            ; h[8t..]
    v_subrev_u32 v2, 16, v2
    v_cmp_ne_u32 vcc, 0, v0
    s_and_saveexec_b64 s[12:13], vcc
    global_load_dwordx4 v[8:11], v2, s[6:7]             ; K[8t-8..8t-1]
    s_mov_b64 exec, s[12:13]
    v_cmp_eq_u32 vcc, 0, v0
    s_waitcnt vmcnt(0)
    v_cndmask_b32 v8, v8, 0, vcc
    v_cndmask_b32 v9, v9, 0, vcc
    v_cndmask_b32 v10, v10, 0, vcc
    v_cndmask_b32 v11, v11, 0, vcc
    ds_write_b128 v1, v[16:19] offset:%d
    s_mov_b32 s14, 0x03020504
    ''' % (WS_K, WS_HT, HOFF + 512))
    for e in range(8):
        for p in range(4):
            a = 8 + e - 2*p
            if a % 2 == 1:
                w = 8 + (a - 1)//2
                k(f'v_alignbit_b32 v{20+p}, v{w}, v{w}, 16')
            else:
                k(f'v_perm_b32 v{20+p}, v{8+a//2}, v{8+a//2-1}, s14')
        k(f'ds_write_b128 v1, v[20:23] offset:{e*CS + 16}')
        k('s_nop 1')
    k(f'''
    v_mov_b32 v20, 0
    v_mov_b32 v21, 0
    v_mov_b32 v22, 0
    v_mov_b32 v23, 0
    v_cmp_gt_u32 vcc, 8, v0
    s_and_saveexec_b64 s[12:13], vcc
    v_mul_u32_u24 v2, {CS}, v0
    ds_write_b128 v2, v[20:23]
    s_mov_b64 exec, s[12:13]
    v_cmp_gt_u32 vcc, 32, v0
    s_and_saveexec_b64 s[12:13], vcc
    ds_write_b128 v1, v[20:23] offset:{HOFF}
    s_mov_b64 exec, s[12:13]
    s_waitcnt lgkmcnt(0)
    s_barrier
    v_and_b32 v1, 15, v0                 ; r / col
    v_bfe_u32 v2, v0, 4, 2               ; g
    ; A addr = e*CS + (M+8)*2, M = 16*(g/2) - 8*(g%2) + 8*(r/8)
    v_and_b32 v3, 7, v1
    v_mul_u32_u24 v3, {CS}, v3
    v_lshrrev_b32 v4, 1, v2
    v_lshlrev_b32 v4, 5, v4              ; 16*(g/2)*2
    v_and_b32 v5, 1, v2
    v_lshlrev_b32 v5, 4, v5              ; 8*(g%2)*2
    v_sub_u32 v4, v4, v5
    v_lshrrev_b32 v6, 3, v1
    v_lshlrev_b32 v6, 4, v6
    v_add_u32 v4, v4, v6
    v_add_u32 v4, 16, v4
    v_add_u32 v3, v3, v4
    ; B addr tile t: HOFF + (16*(16t + col - g/2) + 8*(g%2) + 256)*2
    v_lshrrev_b32 v4, 1, v2
    v_sub_u32 v4, v1, v4
    v_lshlrev_b32 v4, 5, v4
    v_add_u32 v4, v4, v5
    v_add_u32 v4, {HOFF + 512}, v4       ; tile 0
    s_lshl_b32 s15, s23, 9               ; t=w : 16*16*2*w
    v_add_u32 v6, s15, v4
    s_sub_u32 s16, 7, s23
    s_lshl_b32 s16, s16, 9
    v_add_u32 v7, s16, v4
    v_mov_b32 v40, 0
    v_mov_b32 v41, 0
    v_mov_b32 v42, 0
    v_mov_b32 v43, 0
    v_mov_b32 v44, 0
    v_mov_b32 v45, 0
    v_mov_b32 v46, 0
    v_mov_b32 v47, 0
    s_add_u32 s17, s23, 1
    s_lshl_b32 s17, s17, 3               ; 8(w+1)
    s_sub_u32 s18, 8, s23
    s_lshl_b32 s18, s18, 3               ; 8(8-w)
    s_mov_b32 s19, 0
    ''')
    k.put('.conv_l1')
    k('''
    ds_read_b128 v[8:11], v3
    ds_read_b128 v[12:15], v6
    ds_read_b128 v[16:19], v7
    v_add_u32 v3, 64, v3
    v_subrev_u32 v6, 64, v6
    v_subrev_u32 v7, 64, v7
    s_waitcnt lgkmcnt(0)
    v_mfma_f32_16x16x32_bf16 v[40:43], v[8:11], v[12:15], v[40:43]
    v_mfma_f32_16x16x32_bf16 v[44:47], v[8:11], v[16:19], v[44:47]
    s_add_u32 s19, s19, 1
    s_cmp_lt_u32 s19, s17
    s_cbranch_scc1 .conv_l1
    ''')
    k.put('.conv_l2')
    k('''
    s_cmp_ge_u32 s19, s18
    s_cbranch_scc1 .conv_ep
    ds_read_b128 v[8:11], v3
    ds_read_b128 v[16:19], v7
    v_add_u32 v3, 64, v3
    v_subrev_u32 v7, 64, v7
    s_waitcnt lgkmcnt(0)
    v_mfma_f32_16x16x32_bf16 v[44:47], v[8:11], v[16:19], v[44:47]
    s_add_u32 s19, s19, 1
    s_branch .conv_l2
    ''')
    k.put('.conv_ep')
    k('''
    s_nop 7
    s_nop 7
    v_cvt_pk_bf16_f32 v8, v40, v41
    v_cvt_pk_bf16_f32 v9, v42, v43
    v_cvt_pk_bf16_f32 v10, v44, v45
    v_cvt_pk_bf16_f32 v11, v46, v47
    v_lshlrev_b32 v4, 5, v1              ; 16col*2
    v_lshlrev_b32 v5, 3, v2              ; 4g*2
    v_add_u32 v4, v4, v5
    s_lshl_b32 s8, s2, 12
    s_add_u32 s8, s8, %d
    v_add_u32 v4, s8, v4
    v_add_u32 v5, s15, v4
    v_add_u32 v6, s16, v4
    global_store_dwordx2 v5, v[8:9], s[6:7]
    global_store_dwordx2 v6, v[10:11], s[6:7]
    ''' % WS_YT)
    k.put('.conv_done')
    k('s_endpgm')
    return k.text(48), 'conv_kernel', (640, 1, 1), (256, 1, 1), HOFF + 4608 + 512
```

```python
from common import *

def gen_gemm(mode):
    name = 'gemm1_kernel' if mode == 1 else 'gemm2_kernel'
    k = K(name)
    WM = 2 if mode == 1 else 1
    BM = 64 * WM
    KD = 640 if mode == 1 else 1728
    NT = 27 if mode == 1 else 5
    NWG = (2048 // BM) * NT
    ASTR, BSTR = 80, 272
    BOFF = BM * ASTR
    ALD = BM * 4 // 256
    arow = KD * 2
    brow = 3456 if mode == 1 else 1280
    k(f'''
    s_cmp_ge_u32 s2, {NWG}
    s_cbranch_scc1 .{name}_done
    s_load_dwordx2 s[6:7], s[0:1], 136
    s_load_dwordx4 s[8:11], s[0:1], 80      ; w1, w3
    s_load_dwordx2 s[12:13], s[0:1], 96     ; w2
    s_load_dwordx2 s[14:15], s[0:1], 120    ; out
    s_mov_b32 s16, {(2**32 + NT - 1)//NT}
    s_mul_hi_u32 s17, s2, s16               ; tm
    s_mul_i32 s18, s17, {NT}
    s_sub_u32 s18, s2, s18                  ; tn
    v_lshrrev_b32 v1, 6, v0
    s_nop 0
    v_readfirstlane_b32 s23, v1
    s_waitcnt lgkmcnt(0)
    s_add_u32 s4, s6, {WS_H2 if mode == 1 else WS_ACT}
    s_addc_u32 s5, s7, 0
    ; A global offsets: thread t -> row t/4 (+64*i), chunk t%4
    v_lshrrev_b32 v1, 2, v0
    v_and_b32 v2, 3, v0
    s_mul_i32 s19, s17, {BM}
    v_add_u32 v3, s19, v1
    v_mul_lo_u32 v3, v3, {arow // 64}
    v_lshlrev_b32 v3, 6, v3
    v_lshlrev_b32 v4, 4, v2
    v_add_u32 v3, v3, v4
    v_mul_u32_u24 v5, {ASTR}, v1
    v_add_u32 v5, v5, v4
    ; B: thread t -> krow t/16 (+16), chunk t%16
    v_lshrrev_b32 v1, 4, v0
    v_and_b32 v2, 15, v0
    v_mul_u32_u24 v6, {brow}, v1
    v_mul_u32_u24 v7, {BSTR}, v1
    v_lshlrev_b32 v4, 4, v2
    v_add_u32 v7, v7, v4
    v_add_u32 v7, {BOFF}, v7
    ''')
    if mode == 1:
        k('''
        v_and_b32 v4, 7, v2
        v_lshlrev_b32 v4, 4, v4
        s_lshl_b32 s20, s18, 7
        v_add_u32 v6, v6, v4
        v_add_u32 v6, s20, v6
        v_cmp_gt_u32 vcc, 8, v2
        v_mov_b32 v8, s10
        v_mov_b32 v9, s8
        s_nop 0
        v_cndmask_b32 v8, v8, v9, vcc
        v_mov_b32 v9, s11
        v_mov_b32 v10, s9
        v_cndmask_b32 v9, v9, v10, vcc
        v_add_co_u32 v8, vcc, v8, v6
        v_addc_co_u32 v9, vcc, 0, v9, vcc
        ''')
    else:
        k('''
        s_lshl_b32 s20, s18, 8
        v_add_u32 v6, v6, v4
        v_add_u32 v6, s20, v6
        v_mov_b32 v9, s13
        v_add_co_u32 v8, vcc, s12, v6
        v_addc_co_u32 v9, vcc, 0, v9, vcc
        ''')
    NACC = WM * 2 * 16
    for i in range(NACC): k(f'v_mov_b32 v{64+i}, 0')
    k(f'''
    v_and_b32 v1, 31, v0
    v_bfe_u32 v2, v0, 5, 1
    s_lshr_b32 s24, s23, 1                  ; wm
    s_and_b32 s25, s23, 1                   ; wn
    s_mul_i32 s26, s24, {32*WM*ASTR}
    v_mul_u32_u24 v10, {ASTR}, v1
    v_lshlrev_b32 v4, 4, v2
    v_add_u32 v10, v10, v4
    v_add_u32 v10, s26, v10
    ; B tr addr: 16-lane group q=lane/16: cols 16*(q%2).., k0 = 8*(q/2); lane in grp: r=(l%16)/4, c=l%4
    v_and_b32 v4, 15, v0
    v_lshrrev_b32 v11, 2, v4
    v_mul_u32_u24 v11, {BSTR}, v11
    v_and_b32 v4, 3, v0
    v_lshlrev_b32 v4, 3, v4
    v_add_u32 v11, v11, v4
    v_bfe_u32 v4, v0, 4, 1
    v_lshlrev_b32 v4, 5, v4
    v_add_u32 v11, v11, v4
    v_mul_u32_u24 v4, {8*BSTR}, v2
    v_add_u32 v11, v11, v4
    s_lshl_b32 s26, s25, 6
    v_add_u32 v11, s26, v11
    v_add_u32 v11, {BOFF}, v11
    s_mov_b32 s27, 0
    ''')
    boff2 = 128
    k.put(f'.{name}_loop')
    for i in range(ALD):
        k(f'global_load_dwordx4 v[{16+4*i}:{19+4*i}], v3, s[4:5] offset:{0}' if i == 0 else
          f'global_load_dwordx4 v[{16+4*i}:{19+4*i}], v12, s[4:5]')
        if i == 0 and ALD > 1: k(f'v_add_u32 v12, {64*arow}, v3')
    k('global_load_dwordx4 v[24:27], v[8:9], off')
    k(f'v_add_co_u32 v14, vcc, {16*brow}, v8')
    k('v_addc_co_u32 v15, vcc, 0, v9, vcc')
    k('global_load_dwordx4 v[28:31], v[14:15], off')
    k('v_add_u32 v3, 64, v3')
    k(f'v_add_co_u32 v8, vcc, {32*brow}, v8')
    k('v_addc_co_u32 v9, vcc, 0, v9, vcc')
    k('s_barrier')
    k('s_waitcnt vmcnt(0)')
    for i in range(ALD):
        k(f'ds_write_b128 v5, v[{16+4*i}:{19+4*i}] offset:{64*ASTR*i}')
    k('ds_write_b128 v7, v[24:27]')
    k(f'ds_write_b128 v7, v[28:31] offset:{16*BSTR}')
    k('s_waitcnt lgkmcnt(0)')
    k('s_barrier')
    for kk in range(2):
        for mi in range(WM):
            k(f'ds_read_b128 v[{32+4*mi}:{35+4*mi}], v10 offset:{32*kk + 32*ASTR*mi}')
        for nb in range(2):
            k(f'ds_read_b64_tr_b16 v[{40+4*nb}:{41+4*nb}], v11 offset:{16*kk*BSTR + boff2*nb}')
            k(f'ds_read_b64_tr_b16 v[{42+4*nb}:{43+4*nb}], v11 offset:{(16*kk+4)*BSTR + boff2*nb}')
        k('s_waitcnt lgkmcnt(0)')
        for mi in range(WM):
            for nb in range(2):
                a = 64 + 16*(2*mi+nb)
                k(f'v_mfma_f32_32x32x16_bf16 v[{a}:{a+15}], v[{32+4*mi}:{35+4*mi}], v[{40+4*nb}:{43+4*nb}], v[{a}:{a+15}]')
    k(f'''
    s_add_u32 s27, s27, 1
    s_cmp_lt_u32 s27, {KD//32}
    s_cbranch_scc1 .{name}_loop
    s_nop 15
    s_nop 3
    ''')
    k(f'''
    s_mul_i32 s19, s17, {BM}
    s_mul_i32 s26, s24, {32*WM}
    s_add_u32 s19, s19, s26
    v_lshlrev_b32 v4, 2, v2
    v_add_u32 v4, s19, v4
    ''')
    if mode == 1:
        k(f'''
        s_lshl_b32 s26, s18, 6
        s_lshl_b32 s28, s25, 5
        s_add_u32 s26, s26, s28
        v_add_u32 v5, s26, v1                 ; col f
        v_lshlrev_b32 v5, 1, v5
        v_mul_u32_u24 v6, 3456, v4
        v_add_u32 v6, v6, v5
        s_add_u32 s4, s6, {WS_ACT}
        s_addc_u32 s5, s7, 0
        ''')
        for mi in range(WM):
            for i in range(16):
                g = 64 + 32*mi + i; u = g + 16
                roff = (32*mi + 8*(i//4) + i % 4) * 3456
                k(f'''
                v_cvt_pk_bf16_f32 v7, v{g}, v{u}
                v_lshlrev_b32 v8, 16, v7
                v_and_b32 v9, 0xffff0000, v7
                v_mul_f32 v12, 0xbfb8aa3b, v8
                v_exp_f32 v12, v12
                s_nop 0
                v_add_f32 v12, 1.0, v12
                v_rcp_f32 v12, v12
                s_nop 0
                v_mul_f32 v8, v8, v12
                v_cvt_pk_bf16_f32 v8, v8, v8
                v_lshlrev_b32 v8, 16, v8
                v_mul_f32 v8, v8, v9
                v_cvt_pk_bf16_f32 v8, v8, v8
                v_add_u32 v13, {roff}, v6
                global_store_short v13, v8, s[4:5]
                ''')
    else:
        k(f'''
        s_lshl_b32 s26, s18, 7
        s_lshl_b32 s28, s25, 5
        s_add_u32 s26, s26, s28
        v_add_u32 v5, s26, v1                 ; col (block0)
        v_lshlrev_b32 v7, 2, v5
        global_load_dword v14, v7, s[6:7] offset:{3200*4 - 12288}' ''' .replace("' ", '') if False else f'''
        s_lshl_b32 s26, s18, 7
        s_lshl_b32 s28, s25, 5
        s_add_u32 s26, s26, s28
        v_add_u32 v5, s26, v1
        v_lshlrev_b32 v7, 2, v5
        v_add_u32 v7, {3200*4}, v7
        global_load_dword v14, v7, s[6:7]
        global_load_dword v15, v7, s[6:7] offset:256
        v_lshlrev_b32 v5, 1, v5
        v_mul_u32_u24 v6, 1280, v4
        v_add_u32 v6, v6, v5
        s_add_u32 s4, s6, {WS_X1}
        s_addc_u32 s5, s7, 0
        ''')
        for nb in range(2):
            for i in range(16):
                a = 64 + 16*nb + i
                roff = (8*(i//4) + i % 4) * 1280 + 128*nb
                k(f'''
                v_add_u32 v13, {roff}, v6
                global_load_ushort v9, v13, s[4:5]
                v_cvt_pk_bf16_f32 v8, v{a}, v{a}
                v_lshlrev_b32 v8, 16, v8
                s_waitcnt vmcnt(0)
                v_mul_f32 v8, v8, v{14+nb}
                v_cvt_pk_bf16_f32 v8, v8, v8
                v_lshlrev_b32 v8, 16, v8
                v_lshlrev_b32 v9, 16, v9
                v_add_f32 v8, v8, v9
                v_cvt_pk_bf16_f32 v8, v8, v8
                global_store_short v13, v8, s[14:15]
                ''')
    k.put(f'.{name}_done')
    k('s_endpgm')
    return k.text(64 + NACC), name, (NWG, 1, 1), (256, 1, 1), BOFF + 32*BSTR
```

```python
from common import *

def reduce64(k, regs, tmp, addr):
    for m in (1, 2, 4, 8, 16, 32):
        k(f'v_xor_b32 v{tmp[0]}, {m*4}, v{addr}')
        for i, r in enumerate(regs):
            k(f'ds_bpermute_b32 v{tmp[1+i]}, v{tmp[0]}, v{r}')
        k('s_waitcnt lgkmcnt(0)')
        for i, r in enumerate(regs):
            k(f'v_add_f32 v{r}, v{r}, v{tmp[1+i]}')

def load_row10(k, vdst, voff, sbase, extra=''):
    k(f'global_load_dwordx4 v[{vdst}:{vdst+3}], v{voff}, s[{sbase}:{sbase+1}]{extra}')
    k(f'global_load_dword v{vdst+4}, v{voff}, s[{sbase}:{sbase+1}] offset:16{extra}')

def unpack10(k, src, dst):
    for p in range(5):
        k(f'v_lshlrev_b32 v{dst+2*p}, 16, v{src+p}')
        k(f'v_and_b32 v{dst+2*p+1}, 0xffff0000, v{src+p}')

def load_mod10(k, vdst, voff, sws, idx):
    k(f'v_add_u32 v37, {idx*2560}, v{voff}')
    voff = 37; o = 0
    k(f'global_load_dwordx4 v[{vdst}:{vdst+3}], v{voff}, s[{sws}:{sws+1}] offset:{o}')
    k(f'global_load_dwordx4 v[{vdst+4}:{vdst+7}], v{voff}, s[{sws}:{sws+1}] offset:{o+16}')
    k(f'global_load_dwordx2 v[{vdst+8}:{vdst+9}], v{voff}, s[{sws}:{sws+1}] offset:{o+32}')

def ln_rows(k, X, S, T, LA):
    for r in range(4):
        k(f'v_add_f32 v{S+r}, v{X+10*r}, v{X+10*r+1}')
        for e in range(2, 10):
            k(f'v_add_f32 v{S+r}, v{S+r}, v{X+10*r+e}')
    reduce64(k, [S, S+1, S+2, S+3], T, LA)
    for r in range(4):
        k(f'v_mul_f32 v{S+r}, 0x3acccccd, v{S+r}')
        for e in range(10):
            k(f'v_sub_f32 v{X+10*r+e}, v{X+10*r+e}, v{S+r}')
    for r in range(4):
        k(f'v_mul_f32 v{S+r}, v{X+10*r}, v{X+10*r}')
        for e in range(1, 10):
            k(f'v_fma_f32 v{S+r}, v{X+10*r+e}, v{X+10*r+e}, v{S+r}')
    reduce64(k, [S, S+1, S+2, S+3], T, LA)
    for r in range(4):
        k(f'v_mul_f32 v{S+r}, 0x3acccccd, v{S+r}')
        k(f'v_add_f32 v{S+r}, 0x3727c5ac, v{S+r}')
        k(f'v_rsq_f32 v{S+r}, v{S+r}')
        k('s_nop 0')
        for e in range(10):
            k(f'v_mul_f32 v{X+10*r+e}, v{X+10*r+e}, v{S+r}')

def gen_ln1():
    k = K('ln1_kernel')
    X = 40
    k('''
    s_cmp_ge_u32 s2, 128
    s_cbranch_scc1 .ln1_done
    s_load_dwordx2 s[4:5], s[0:1], 0
    s_load_dwordx2 s[6:7], s[0:1], 136
    v_lshrrev_b32 v1, 6, v0
    s_nop 0
    v_readfirstlane_b32 s23, v1
    v_and_b32 v1, 63, v0                 ; lane
    v_mul_u32_u24 v2, 20, v1
    s_lshl_b32 s8, s2, 4
    s_lshl_b32 s9, s23, 2
    s_add_u32 s8, s8, s9
    s_mul_i32 s8, s8, 1280
    v_add_u32 v2, s8, v2
    v_lshlrev_b32 v3, 1, v2              ; unused
    v_mul_u32_u24 v4, 40, v1
    v_lshlrev_b32 v5, 2, v1              ; lane*4
    s_waitcnt lgkmcnt(0)
    ''')
    for r in range(4):
        load_row10(k, 8 + 6*r, 2, 4, f'' )
        if r < 3: k('v_add_u32 v2, 1280, v2')
    load_mod10(k, 80, 4, 6, 0)
    load_mod10(k, 90, 4, 6, 1)
    k('s_waitcnt vmcnt(0)')
    for r in range(4):
        unpack10(k, 8 + 6*r, X + 10*r)
    ln_rows(k, X, 28, [32, 33, 34, 35, 36], 5)
    for e in range(0, 10, 2):
        k(f'v_add_f32 v{90+e}, 1.0, v{90+e}')
        k(f'v_add_f32 v{91+e}, 1.0, v{91+e}')
        k(f'v_cvt_pk_bf16_f32 v6, v{90+e}, v{91+e}')
        k(f'v_lshlrev_b32 v{90+e}, 16, v6')
        k(f'v_and_b32 v{91+e}, 0xffff0000, v6')
    for r in range(4):
        for e in range(10):
            k(f'v_fma_f32 v{X+10*r+e}, v{X+10*r+e}, v{90+e}, v{80+e}')
    k('''
    v_mul_u32_u24 v6, 320, v1
    s_lshl_b32 s9, s23, 3
    v_add_u32 v6, s9, v6
    ''')
    for e in range(10):
        k(f'v_cvt_pk_bf16_f32 v8, v{X+e}, v{X+10+e}')
        k(f'v_cvt_pk_bf16_f32 v9, v{X+20+e}, v{X+30+e}')
        k(f'ds_write_b64 v6, v[8:9] offset:{32*e}')
    k('''
    s_waitcnt lgkmcnt(0)
    s_barrier
    s_lshl_b32 s8, s2, 5
    s_add_u32 s8, s8, %d
    ''' % WS_HT)
    for it in range(3):
        if it == 2:
            k('''
            v_cmp_gt_u32 vcc, 128, v0
            s_and_saveexec_b64 s[10:11], vcc
            s_cbranch_execz .ln1_done
            ''')
        k(f'''
        v_add_u32 v6, {256*it}, v0
        v_lshlrev_b32 v7, 5, v6
        ds_read_b128 v[8:11], v7
        ds_read_b128 v[12:15], v7 offset:16
        v_lshlrev_b32 v7, 12, v6
        v_add_u32 v7, s8, v7
        s_waitcnt lgkmcnt(0)
        global_store_dwordx4 v7, v[8:11], s[6:7]
        global_store_dwordx4 v7, v[12:15], s[6:7] offset:16
        ''')
    k.put('.ln1_done')
    k('s_endpgm')
    return k.text(100), 'ln1_kernel', (128, 1, 1), (256, 1, 1), 20480

def gen_ln2():
    k = K('ln2_kernel')
    X = 40
    k('''
    s_cmp_ge_u32 s2, 128
    s_cbranch_scc1 .ln2_done
    s_load_dwordx2 s[4:5], s[0:1], 0
    s_load_dwordx2 s[6:7], s[0:1], 136
    v_lshrrev_b32 v1, 6, v0
    s_nop 0
    v_readfirstlane_b32 s23, v1
    s_waitcnt lgkmcnt(0)
    s_lshl_b32 s8, s2, 5
    s_add_u32 s8, s8, %d
    ''' % WS_YT)
    for it in range(3):
        if it == 2:
            k('''
            v_cmp_gt_u32 vcc, 128, v0
            s_and_saveexec_b64 s[10:11], vcc
            ''')
        k(f'''
        v_add_u32 v6, {256*it}, v0
        v_lshlrev_b32 v7, 12, v6
        v_add_u32 v7, s8, v7
        global_load_dwordx4 v[8:11], v7, s[6:7]
        global_load_dwordx4 v[12:15], v7, s[6:7] offset:16
        v_lshlrev_b32 v7, 5, v6
        s_waitcnt vmcnt(0)
        ds_write_b128 v7, v[8:11]
        ds_write_b128 v7, v[12:15] offset:16
        ''')
    k('''
    s_mov_b64 exec, -1
    v_and_b32 v1, 63, v0                 ; lane
    v_mul_u32_u24 v2, 20, v1
    s_lshl_b32 s8, s2, 4
    s_lshl_b32 s9, s23, 2
    s_add_u32 s8, s8, s9
    s_mul_i32 s8, s8, 1280
    v_add_u32 v2, s8, v2
    v_mul_u32_u24 v4, 40, v1
    v_lshlrev_b32 v5, 2, v1
    v_mov_b32 v3, v2
    ''')
    for r in range(4):
        load_row10(k, 8 + 6*r, 3, 4)
        if r < 3: k('v_add_u32 v3, 1280, v3')
    load_mod10(k, 80, 4, 6, 2)
    load_mod10(k, 90, 4, 6, 3)
    load_mod10(k, 100, 4, 6, 4)
    k('''
    s_waitcnt lgkmcnt(0)
    s_barrier
    v_mul_u32_u24 v6, 320, v1
    s_lshl_b32 s9, s23, 3
    v_add_u32 v6, s9, v6
    ''')
    for e in range(10):
        k(f'ds_read_b64 v[{110+2*e}:{111+2*e}], v6 offset:{32*e}')
    k('s_waitcnt vmcnt(0) lgkmcnt(0)')
    for r in range(4):
        unpack10(k, 8 + 6*r, X + 10*r)
    for e in range(10):
        for r in range(4):
            src = 110 + 2*e + r//2
            if r % 2 == 0: k(f'v_lshlrev_b32 v6, 16, v{src}')
            else: k(f'v_and_b32 v6, 0xffff0000, v{src}')
            k(f'v_mul_f32 v6, v6, v{80+e}')
            k(f'v_cvt_pk_bf16_f32 v6, v6, v6')
            k(f'v_lshlrev_b32 v6, 16, v6')
            k(f'v_add_f32 v6, v6, v{X+10*r+e}')
            k(f'v_cvt_pk_bf16_f32 v6, v6, v6')
            k(f'v_lshlrev_b32 v{X+10*r+e}, 16, v6')
    k('s_add_u32 s12, s6, %d' % WS_X1)
    k('s_addc_u32 s13, s7, 0')
    k('s_add_u32 s14, s6, %d' % WS_H2)
    k('s_addc_u32 s15, s7, 0')
    def store_rows(sb):
        k('v_mov_b32 v3, v2')
        for r in range(4):
            for p in range(5):
                k(f'v_cvt_pk_bf16_f32 v{8+p}, v{X+10*r+2*p}, v{X+10*r+2*p+1}')
            k(f'global_store_dwordx4 v3, v[8:11], s[{sb}:{sb+1}]')
            k(f'global_store_dword v3, v12, s[{sb}:{sb+1}] offset:16')
            k('v_add_u32 v3, 1280, v3')
            k('s_nop 1')
    store_rows(12)
    ln_rows(k, X, 28, [32, 33, 34, 35, 36], 5)
    for e in range(0, 10, 2):
        k(f'v_add_f32 v{100+e}, 1.0, v{100+e}')
        k(f'v_add_f32 v{101+e}, 1.0, v{101+e}')
        k(f'v_cvt_pk_bf16_f32 v6, v{100+e}, v{101+e}')
        k(f'v_lshlrev_b32 v{100+e}, 16, v6')
        k(f'v_and_b32 v{101+e}, 0xffff0000, v6')
    for r in range(4):
        for e in range(10):
            k(f'v_fma_f32 v{X+10*r+e}, v{X+10*r+e}, v{100+e}, v{90+e}')
    store_rows(14)
    k.put('.ln2_done')
    k('s_endpgm')
    return k.text(132), 'ln2_kernel', (128, 1, 1), (256, 1, 1), 20480
```

```python
from common import *

def gen_prep():
    k = K('prep_kernel')
    XB = 2048
    KP = 34816
    k('''
    s_cmp_ge_u32 s2, 670
    s_cbranch_scc1 .prep_done
    s_cmp_ge_u32 s2, 640
    s_cbranch_scc1 .prep_mod
    s_load_dwordx4 s[4:7], s[0:1], 8
    s_load_dwordx4 s[8:11], s[0:1], 24
    s_load_dwordx4 s[12:15], s[0:1], 40
    s_load_dwordx4 s[16:19], s[0:1], 56
    s_load_dwordx2 s[20:21], s[0:1], 136
    v_lshrrev_b32 v10, 6, v0
    s_nop 0
    v_readfirstlane_b32 s23, v10          ; wave id
    s_waitcnt lgkmcnt(0)
    s_cmp_ge_u32 s23, 2
    s_cbranch_scc1 .prep_p_skip
    v_lshlrev_b32 v1, 1, v0
    s_lshl_b32 s3, s2, 8
    v_add_u32 v1, s3, v1
    global_load_ushort v2, v1, s[4:5]
    global_load_ushort v3, v1, s[6:7]
    global_load_ushort v4, v1, s[8:9]
    global_load_ushort v5, v1, s[10:11]
    global_load_ushort v6, v1, s[12:13]
    global_load_ushort v7, v1, s[14:15]
    s_lshl_b32 s22, s2, 1
    v_mov_b32 v8, s22
    global_load_ushort v9, v8, s[16:17]
    s_waitcnt vmcnt(0)
    v_lshlrev_b32 v2, 16, v2
    v_lshlrev_b32 v3, 16, v3
    v_lshlrev_b32 v4, 16, v4
    v_lshlrev_b32 v5, 16, v5
    v_lshlrev_b32 v6, 16, v6
    v_lshlrev_b32 v7, 16, v7
    v_lshlrev_b32 v9, 16, v9
    v_mul_f32 v9, 0x%x, v9
    v_exp_f32 v9, v9
    s_nop 0
    v_cvt_pk_bf16_f32 v9, v9, v9
    v_lshlrev_b32 v9, 16, v9              ; dt (bf16 rounded)
    v_mul_f32 v2, v2, v9                  ; ar
    v_mul_f32 v3, v3, v9                  ; ai
    v_mul_f32 v4, v4, v9                  ; dBr
    v_mul_f32 v5, v5, v9                  ; dBi
    v_mul_f32 v14, v6, v4
    v_fma_f32 v14, -v7, v5, v14           ; CBr
    v_mul_f32 v15, v6, v5
    v_fma_f32 v15, v7, v4, v15            ; CBi
    v_mul_f32 v12, 0x%x, v2
    v_mul_f32 v13, 0x%x, v3
    v_lshlrev_b32 v1, 4, v0
    ds_write_b128 v1, v[12:15]
    .prep_p_skip:
    s_waitcnt lgkmcnt(0)
    s_barrier
    ''' % (LOG2E, LOG2E, INV2PI))
    k('''
    s_lshl_b32 s24, 1, s23               ; stride
    s_lshl_b32 s25, 128, s23
    s_cmp_eq_u32 s23, 0
    s_cselect_b32 s25, 0, s25            ; base
    s_lshl_b32 s26, s24, 5               ; 32*stride
    s_lshl_b32 s27, s23, 13
    s_add_u32 s27, s27, %d               ; X region of this wave
    v_and_b32 v1, 63, v0                 ; lane
    v_lshlrev_b32 v2, 4, v1              ; P addr n=lane
    ds_read_b128 v[12:15], v2
    ds_read_b128 v[16:19], v2 offset:1024
    v_lshlrev_b32 v3, 6, v1
    v_add_u32 v3, s27, v3                ; X addr for n=lane
    s_waitcnt lgkmcnt(0)
    ''' % XB)
    for i in range(8):
        k(f's_mul_i32 s28, s26, {i}')
        k('s_add_u32 s28, s28, s25')
        k('v_cvt_f32_u32 v4, s28')
        for q, pb in enumerate((12, 16)):
            k(f'''
            v_mul_f32 v5, v{pb}, v4
            v_exp_f32 v5, v5
            v_mul_f32 v6, v{pb+1}, v4
            v_fract_f32 v6, v6
            v_sin_f32 v7, v6
            v_cos_f32 v8, v6
            s_nop 0
            v_mul_f32 v9, v{pb+2}, v8
            v_fma_f32 v9, -v{pb+3}, v7, v9
            v_mul_f32 v10, v{pb+2}, v7
            v_fma_f32 v10, v{pb+3}, v8, v10
            v_mul_f32 v20, v5, v9
            v_mul_f32 v21, v5, v10
            ds_write_b64 v3, v[20:21] offset:{q*64*64 + i*8}
            ''')
    k('''
    v_and_b32 v4, 31, v0
    v_lshlrev_b32 v4, s23, v4
    v_cvt_f32_u32 v4, v4                 ; lj
    v_bfe_u32 v5, v0, 5, 1               ; half
    v_lshlrev_b32 v6, 10, v5
    v_lshlrev_b32 v7, 12, v5
    v_add_u32 v7, s27, v7                ; X addr
    ''')
    for i in range(8):
        k(f'v_mov_b32 v{24+i}, 0')
    k('s_waitcnt lgkmcnt(0)')
    k('s_mov_b32 s28, 0')
    k.put('.prep_loop')
    k('''
    ds_read_b64 v[8:9], v6
    ds_read_b128 v[32:35], v7
    ds_read_b128 v[36:39], v7 offset:16
    ds_read_b128 v[40:43], v7 offset:32
    ds_read_b128 v[44:47], v7 offset:48
    v_add_u32 v6, 16, v6
    v_add_u32 v7, 64, v7
    s_waitcnt lgkmcnt(4)
    v_mul_f32 v10, v8, v4
    v_exp_f32 v10, v10
    v_mul_f32 v11, v9, v4
    v_fract_f32 v11, v11
    v_sin_f32 v12, v11
    v_cos_f32 v13, v11
    s_nop 0
    v_mul_f32 v12, v10, v12              ; ei
    v_mul_f32 v13, v10, v13              ; er
    s_waitcnt lgkmcnt(0)
    ''')
    for i in range(8):
        k(f'v_fma_f32 v{24+i}, v{32+2*i}, v13, v{24+i}')
        k(f'v_fma_f32 v{24+i}, -v{33+2*i}, v12, v{24+i}')
    k('''
    s_add_u32 s28, s28, 1
    s_cmp_lt_u32 s28, 64
    s_cbranch_scc1 .prep_loop
    ''')
    k('''
    s_lshl_b32 s28, s23, 7               ; 128*w
    s_add_u32 s29, s28, 128
    s_cmp_eq_u32 s23, 0
    s_cselect_b32 s28, 0, s29            ; segoff: 0,256,384,512
    v_and_b32 v8, 31, v0
    v_add_u32 v8, s28, v8
    v_lshlrev_b32 v8, 2, v8
    v_mul_u32_u24 v9, 2816, v5
    v_add_u32 v8, v8, v9
    v_add_u32 v8, %d, v8
    ds_write_b32 v8, v24
    ds_write_b32 v8, v25 offset:128
    ds_write_b32 v8, v26 offset:256
    ds_write_b32 v8, v27 offset:384
    s_cmp_eq_u32 s23, 1
    s_cbranch_scc1 .prep_kw
    s_cmp_eq_u32 s23, 2
    s_cbranch_scc1 .prep_kw
    ds_write_b32 v8, v28 offset:512
    s_cmp_eq_u32 s23, 3
    s_cbranch_scc1 .prep_kw
    ds_write_b32 v8, v29 offset:640
    ds_write_b32 v8, v30 offset:768
    ds_write_b32 v8, v31 offset:896
    .prep_kw:
    s_lshl_b32 s22, s2, 1
    v_mov_b32 v1, s22
    global_load_ushort v2, v1, s[18:19]   ; Dskip[d]
    s_waitcnt lgkmcnt(0)
    s_barrier
    v_lshlrev_b32 v3, 3, v0              ; l0 = 8t
    ''' % KP)
    for q in range(8):
        k(f'''
        v_add_u32 v4, {q}, v3
        v_cvt_f32_u32 v4, v4
        v_cvt_pk_bf16_f32 v4, v4, v4
        v_lshlrev_b32 v4, 16, v4
        v_cvt_u32_f32 v5, v4                 ; lb
        v_lshrrev_b32 v6, 23, v4
        v_subrev_u32 v6, 134, v6
        v_max_i32 v6, 0, v6                  ; sh
        v_lshrrev_b32 v5, v6, v5
        v_lshlrev_b32 v6, 7, v6
        v_add_u32 v5, v5, v6                 ; pos
        v_lshlrev_b32 v5, 2, v5
        v_add_u32 v5, {KP}, v5
        ds_read_b32 v{32+q}, v5
        ds_read_b32 v{40+q}, v5 offset:2816
        ''')
    k('s_waitcnt vmcnt(0) lgkmcnt(0)')
    for q in range(8):
        k(f'v_add_f32 v{32+q}, v{32+q}, v{40+q}')
    k('''
    v_lshlrev_b32 v2, 16, v2
    v_cmp_eq_u32 vcc, 0, v0
    s_nop 1
    v_cndmask_b32 v2, 0, v2, vcc
    v_add_f32 v32, v32, v2
    v_cvt_pk_bf16_f32 v8, v32, v33
    v_cvt_pk_bf16_f32 v9, v34, v35
    v_cvt_pk_bf16_f32 v10, v36, v37
    v_cvt_pk_bf16_f32 v11, v38, v39
    s_lshl_b32 s22, s2, 12
    s_add_u32 s22, s22, %d
    v_lshlrev_b32 v1, 4, v0
    v_add_u32 v1, s22, v1
    global_store_dwordx4 v1, v[8:11], s[20:21]
    s_branch .prep_done
    ''' % WS_K)
    k.put('.prep_mod')
    k('''
    s_load_dwordx4 s[4:7], s[0:1], 104   ; c, w_mod
    s_load_dwordx2 s[20:21], s[0:1], 136
    v_lshrrev_b32 v10, 6, v0
    s_nop 0
    v_readfirstlane_b32 s23, v10
    s_sub_u32 s22, s2, 640               ; g
    s_waitcnt lgkmcnt(0)
    ''')
    for it in range(2):
        k(f'''
        v_add_u32 v11, {256*it}, v0
        v_cmp_gt_u32 vcc, 320, v11
        s_and_saveexec_b64 s[30:31], vcc
        v_lshlrev_b32 v1, 2, v11
        global_load_dword v2, v1, s[4:5]
        s_waitcnt vmcnt(0)
        v_lshlrev_b32 v3, 16, v2
        v_and_b32 v4, 0xffff0000, v2
        ''')
        for v in (3, 4):
            k(f'''
            v_mul_f32 v5, 0xbfb8aa3b, v{v}
            v_exp_f32 v5, v5
            s_nop 0
            v_add_f32 v5, 1.0, v5
            v_rcp_f32 v5, v5
            s_nop 0
            v_mul_f32 v{v}, v{v}, v5
            ''')
        k('''
        v_cvt_pk_bf16_f32 v5, v3, v4
        v_lshlrev_b32 v6, 16, v5
        v_and_b32 v7, 0xffff0000, v5
        v_lshlrev_b32 v1, 3, v11
        ds_write_b64 v1, v[6:7]
        s_mov_b64 exec, s[30:31]
        ''')
    k('''
    s_waitcnt lgkmcnt(0)
    s_barrier
    v_and_b32 v1, 63, v0
    s_lshl_b32 s24, s22, 8               ; g*256 bytes
    v_lshlrev_b32 v2, 2, v1
    v_add_u32 v2, s24, v2
    s_mul_i32 s25, s23, 160*7680
    v_add_u32 v2, s25, v2
    s_mul_i32 s26, s23, 640
    v_mov_b32 v3, s26
    v_mov_b32 v40, 0
    v_mov_b32 v41, 0
    s_mov_b32 s27, 0
    ''')
    k.put('.prep_mloop')
    for j in range(16):
        k(f'global_load_dword v{8+j}, v2, s[6:7]')
        k('v_add_u32 v2, 7680, v2')
    for j in range(4):
        k(f'ds_read_b128 v[{24+4*j}:{27+4*j}], v3 offset:{16*j}')
    k('v_add_u32 v3, 64, v3')
    for j in range(16):
        k(f's_waitcnt vmcnt({15-j}) lgkmcnt(0)')
        k(f'v_lshlrev_b32 v4, 16, v{8+j}')
        k(f'v_and_b32 v5, 0xffff0000, v{8+j}')
        k(f'v_fma_f32 v40, v4, v{24+j}, v40')
        k(f'v_fma_f32 v41, v5, v{24+j}, v41')
    k('''
    s_add_u32 s27, s27, 1
    s_cmp_lt_u32 s27, 10
    s_cbranch_scc1 .prep_mloop
    s_lshl_b32 s24, s23, 9
    v_lshlrev_b32 v1, 3, v1
    v_add_u32 v1, s24, v1
    ds_write_b64 v1, v[40:41] offset:4096
    s_waitcnt lgkmcnt(0)
    s_barrier
    v_cmp_gt_u32 vcc, 128, v0
    s_and_saveexec_b64 s[30:31], vcc
    s_cbranch_execz .prep_done
    v_lshlrev_b32 v1, 2, v0
    ds_read_b32 v2, v1 offset:4096
    ds_read_b32 v3, v1 offset:4608
    ds_read_b32 v4, v1 offset:5120
    ds_read_b32 v5, v1 offset:5632
    s_waitcnt lgkmcnt(0)
    v_add_f32 v2, v2, v3
    v_add_f32 v4, v4, v5
    v_add_f32 v2, v2, v4
    v_cvt_pk_bf16_f32 v2, v2, v2
    v_lshlrev_b32 v2, 16, v2
    s_lshl_b32 s24, s22, 9
    v_add_u32 v1, s24, v1
    global_store_dword v1, v2, s[20:21]
    ''')
    k.put('.prep_done')
    k('s_endpgm')
    return k.text(48), 'prep_kernel', (670, 1, 1), (256, 1, 1), 40448
```

```python
import sys
sys.path.insert(0, 'gen')
from k_prep import gen_prep
from k_ln import gen_ln1, gen_ln2
from k_conv import gen_conv
from k_gemm import gen_gemm
ref = open('adaLN_cond__ssm_conv_s4__glu_gated_swiglu__prompt.s.ref').read()
head = '\n'.join(l for l in ref.split('\n') if l.startswith(';') and '@launch' not in l)
ks = [gen_prep(), gen_conv(), gen_ln2(), gen_gemm(1), gen_gemm(2)]
out = head + '\n'
for (txt, desc), name, g, b, lds in ks:
    out += f'; @launch kernel={name} grid=({g[0]},{g[1]},{g[2]}) block=({b[0]},{b[1]},{b[2]}) lds={lds}\n'
out += '.amdgcn_target "amdgcn-amd-amdhsa--gfx950"\n.text\n'
for (txt, desc), *_ in ks: out += txt
out += '.section .rodata,"a"\n'
for (txt, desc), *_ in ks: out += '.p2align 6\n' + desc
open('adaLN_cond__ssm_conv_s4__glu_gated_swiglu__prompt.s', 'w').write(out)
print('written', len(out))
```

```python
from common import *

def gen_gemm(mode):
    name = 'gemm1_kernel' if mode == 1 else 'gemm2_kernel'
    k = K(name)
    BM = 256 if mode == 1 else 128
    NW = BM // 32
    BN = 128 if mode == 1 else 64
    NB = BN // 64
    KD = 640 if mode == 1 else 1728
    NIT = KD // 64
    NT = 27 if mode == 1 else 10
    NWG = (2048 // BM) * NT
    NST = 3 if mode == 1 else 4
    ABYT = BM * 128
    BRB = BN * 2
    STG = ABYT + 64 * BRB
    BI = BRB * 64 // (1024 * NW)
    PER = 4 + BI
    arow = KD * 2
    brow = 3456 if mode == 1 else 1280
    ACC = 96
    FR = 48
    k(f'''
    s_cmp_ge_u32 s2, {NWG}
    s_cbranch_scc1 .{name}_done
    s_load_dwordx2 s[6:7], s[0:1], 136
    s_load_dwordx4 s[8:11], s[0:1], 80
    s_load_dwordx2 s[12:13], s[0:1], 96
    s_load_dwordx2 s[14:15], s[0:1], 120
    s_mov_b32 s16, {(2**32 + NT - 1)//NT}
    s_mul_hi_u32 s17, s2, s16
    s_mul_i32 s18, s17, {NT}
    s_sub_u32 s18, s2, s18
    v_lshrrev_b32 v1, 6, v0
    s_nop 0
    v_readfirstlane_b32 s23, v1
    s_waitcnt lgkmcnt(0)
    s_add_u32 s4, s6, {WS_H2 if mode == 1 else WS_ACT}
    s_addc_u32 s5, s7, 0
    ''')
    k(f'''
    v_and_b32 v13, 63, v0
    s_lshr_b32 s24, s23, 1
    s_and_b32 s25, s23, 1
    ; A DMA source: wave w instr j: row = 32w + 8j + l/8 ; chunk = (l%8)^(l/8)
    v_lshrrev_b32 v1, 3, v13
    v_and_b32 v2, 7, v13
    v_xor_b32 v2, v2, v1
    s_mul_i32 s19, s17, {BM}
    s_lshl_b32 s26, s23, 5
    s_add_u32 s19, s19, s26
    v_add_u32 v3, s19, v1
    v_mul_lo_u32 v3, v3, {arow // 64}
    v_lshlrev_b32 v3, 6, v3
    v_lshlrev_b32 v4, 4, v2
    v_add_u32 v3, v3, v4
    v_mov_b32 v5, s5
    v_add_co_u32 v4, vcc, s4, v3
    v_addc_co_u32 v5, vcc, 0, v5, vcc      ; v[4:5] A src
    ''')
    if mode == 1:
        k(f'''
        v_lshrrev_b32 v1, 4, v13
        v_and_b32 v2, 15, v13
        v_lshlrev_b32 v6, 2, v1
        v_xor_b32 v2, v2, v6
        s_lshl_b32 s26, s23, 3
        v_add_u32 v1, s26, v1
        v_mul_u32_u24 v6, {brow}, v1
        v_and_b32 v7, 7, v2
        v_lshlrev_b32 v7, 4, v7
        v_add_u32 v6, v6, v7
        s_lshl_b32 s20, s18, 7
        v_add_u32 v6, s20, v6
        v_cmp_gt_u32 vcc, 8, v2
        v_mov_b32 v8, s10
        v_mov_b32 v9, s8
        s_nop 0
        v_cndmask_b32 v8, v8, v9, vcc
        v_mov_b32 v9, s11
        v_mov_b32 v10, s9
        v_cndmask_b32 v9, v9, v10, vcc
        v_add_co_u32 v8, vcc, v8, v6
        v_addc_co_u32 v9, vcc, 0, v9, vcc
        ''')
    else:
        k(f'''
        ; B: wave w instr j: krow = 16w + 8j + l/8 ; chunk = (l%8) ^ (4*((l/16)&1))
        v_lshrrev_b32 v1, 3, v13
        v_and_b32 v2, 7, v13
        v_bfe_u32 v6, v13, 4, 1
        v_lshlrev_b32 v6, 2, v6
        v_xor_b32 v2, v2, v6
        s_lshl_b32 s26, s23, 4
        v_add_u32 v1, s26, v1
        v_mul_u32_u24 v6, {brow}, v1
        v_lshlrev_b32 v7, 4, v2
        v_add_u32 v6, v6, v7
        s_lshl_b32 s20, s18, 7
        v_add_u32 v6, s20, v6
        v_mov_b32 v9, s13
        v_add_co_u32 v8, vcc, s12, v6
        v_addc_co_u32 v9, vcc, 0, v9, vcc
        ''')
    NACC = 2 * NB * 16
    for i in range(NACC): k(f'v_mov_b32 v{ACC+i}, 0')
    k(f'''
    v_and_b32 v1, 31, v0
    v_bfe_u32 v2, v0, 5, 1
    s_lshl_b32 s26, s24, 13
    v_lshlrev_b32 v6, 7, v1
    v_add_u32 v6, s26, v6
    v_and_b32 v7, 7, v1
    ''')
    for kk in range(4):
        k(f'v_add_u32 v12, {2*kk}, v2')
        k('v_xor_b32 v12, v12, v7')
        k('v_lshlrev_b32 v12, 4, v12')
        k(f'v_add_u32 v{40+kk}, v6, v12')
    k(f'''
    v_bfe_u32 v6, v0, 2, 2               ; r
    v_and_b32 v7, 3, v0                  ; c
    v_bfe_u32 v12, v0, 4, 1              ; q
    v_lshlrev_b32 v14, 3, v2
    v_add_u32 v14, v14, v6               ; krow = 8h + r
    v_mul_u32_u24 v14, {BRB}, v14
    v_add_u32 v14, {ABYT}, v14
    v_and_b32 v15, 1, v7
    v_lshlrev_b32 v15, 3, v15
    v_add_u32 v14, v14, v15
    v_lshrrev_b32 v7, 1, v7
    v_lshlrev_b32 v12, 1, v12
    v_add_u32 v7, v7, v12
    s_lshl_b32 s26, s25, 2
    v_add_u32 v7, s26, v7
    ''')
    if mode == 1: k('v_lshlrev_b32 v6, 2, v6')
    else:
        k('v_lshrrev_b32 v6, 1, v6')
        k('v_lshlrev_b32 v6, 2, v6')
    for nb in range(NB):
        k(f'v_add_u32 v12, {8*nb}, v7')
        k('v_xor_b32 v12, v12, v6')
        k('v_lshlrev_b32 v12, 4, v12')
        k(f'v_add_u32 v{44+nb}, v14, v12')
    k('s_lshl_b32 s30, s23, 12')
    k(f's_mul_i32 s31, s23, {1024*BI}')
    k(f's_add_u32 s31, s31, {ABYT}')
    k('s_mov_b32 s28, 0')
    def dma():
        for j in range(4):
            k('s_add_u32 s29, s28, s30')
            k(f's_add_u32 m0, s29, {1024*j}')
            k(f'v_add_co_u32 v14, vcc, {8*j*arow}, v4')
            k('v_addc_co_u32 v15, vcc, 0, v5, vcc')
            k('global_load_lds_dwordx4 v[14:15], off')
        rows = 4 if mode == 1 else 8
        for j in range(BI):
            k('s_add_u32 s29, s28, s31')
            k(f's_add_u32 m0, s29, {1024*j}')
            k(f'v_add_co_u32 v14, vcc, {rows*j*brow}, v8')
            k('v_addc_co_u32 v15, vcc, 0, v9, vcc')
            k('global_load_lds_dwordx4 v[14:15], off')
        k('v_add_co_u32 v4, vcc, 128, v4')
        k('v_addc_co_u32 v5, vcc, 0, v5, vcc')
        k(f'v_add_co_u32 v8, vcc, {64*brow}, v8')
        k('v_addc_co_u32 v9, vcc, 0, v9, vcc')
        k(f's_add_u32 s28, s28, {STG}')
        k(f's_cmp_eq_u32 s28, {NST*STG}')
        k('s_cselect_b32 s28, 0, s28')
    def fread(s_, kk):
        b = FR + 16*s_
        for mi in range(2):
            k(f'ds_read_b128 v[{b+4*mi}:{b+3+4*mi}], v{40+kk} offset:{4096*mi}')
        for nb in range(NB):
            k(f'ds_read_b64_tr_b16 v[{b+8+4*nb}:{b+9+4*nb}], v{44+nb} offset:{16*kk*BRB}')
            k(f'ds_read_b64_tr_b16 v[{b+10+4*nb}:{b+11+4*nb}], v{44+nb} offset:{(16*kk+4)*BRB}')
    NRD = 2 + 2*NB
    def mfmas(s_):
        b = FR + 16*s_
        for mi in range(2):
            for nb in range(NB):
                a = ACC + 16*(NB*mi+nb)
                k(f'v_mfma_f32_32x32x16_bf16 v[{a}:{a+15}], v[{b+4*mi}:{b+3+4*mi}], v[{b+8+4*nb}:{b+11+4*nb}], v[{a}:{a+15}]')
    for _ in range(NST-1): dma()
    k('s_mov_b32 s27, 0')
    k('s_mov_b32 s21, 0')
    k.put(f'.{name}_loop')
    k(f's_cmp_ge_u32 s27, {NIT-(NST-1)}')
    k(f's_cbranch_scc1 .{name}_tail')
    k(f's_waitcnt vmcnt({(NST-2)*PER})')
    k('s_barrier')
    dma()
    k(f's_branch .{name}_cmp')
    k.put(f'.{name}_tail')
    k('s_waitcnt vmcnt(0)')
    k('s_barrier')
    k.put(f'.{name}_cmp')
    fread(0, 0)
    for kk in range(4):
        if kk < 3:
            fread((kk+1) % 2, kk+1)
            k(f's_waitcnt lgkmcnt({NRD})')
        else:
            k('s_waitcnt lgkmcnt(0)')
        mfmas(kk % 2)
    k(f'''
    s_add_u32 s21, s21, {STG}
    s_mov_b32 s29, {STG}
    s_cmp_eq_u32 s21, {NST*STG}
    s_cselect_b32 s29, {-(NST-1)*STG & 0xffffffff}, s29
    s_cselect_b32 s21, 0, s21
    ''')
    for r in [40, 41, 42, 43] + [44+nb for nb in range(NB)]:
        k(f'v_add_u32 v{r}, s29, v{r}')
    k('s_add_u32 s27, s27, 1')
    k(f's_cmp_lt_u32 s27, {NIT}')
    k(f's_cbranch_scc1 .{name}_loop')
    k('s_barrier')
    k('s_nop 15')
    k('s_nop 3')
    CS = 144
    k(f'''
    s_mul_i32 s26, s24, {64*CS}
    s_lshl_b32 s28, s25, 6
    s_add_u32 s26, s26, s28
    v_mul_u32_u24 v4, {4*CS}, v2
    v_lshlrev_b32 v5, 1, v1
    v_add_u32 v4, v4, v5
    v_add_u32 v4, s26, v4
    ''')
    for mi in range(2):
        for i in range(16):
            off = (32*mi + 8*(i//4) + i % 4) * CS
            if mode == 1:
                g = ACC + 32*mi + i; u = g + 16
                k(f'''
                v_cvt_pk_bf16_f32 v7, v{g}, v{u}
                v_lshlrev_b32 v8, 16, v7
                v_and_b32 v9, 0xffff0000, v7
                v_mul_f32 v12, 0xbfb8aa3b, v8
                v_exp_f32 v12, v12
                s_nop 0
                v_add_f32 v12, 1.0, v12
                v_rcp_f32 v12, v12
                s_nop 0
                v_mul_f32 v8, v8, v12
                v_cvt_pk_bf16_f32 v8, v8, v8
                v_lshlrev_b32 v8, 16, v8
                v_mul_f32 v8, v8, v9
                v_cvt_pk_bf16_f32 v8, v8, v8
                ds_write_b16 v4, v8 offset:{off}
                ''')
            else:
                a = ACC + 16*mi + i
                k(f'''
                v_cvt_pk_bf16_f32 v8, v{a}, v{a}
                ds_write_b16 v4, v8 offset:{off}
                ''')
    k(f'''
    s_waitcnt lgkmcnt(0)
    s_barrier
    v_lshrrev_b32 v1, 3, v0
    v_and_b32 v2, 7, v0
    v_mul_u32_u24 v5, {CS}, v1
    v_lshlrev_b32 v4, 4, v2
    v_add_u32 v5, v5, v4
    s_mul_i32 s19, s17, {BM}
    v_add_u32 v6, s19, v1
    ''')
    for i in range(4):
        k(f'ds_read_b128 v[{16+4*i}:{19+4*i}], v5 offset:{8*NW*CS*i}')
    if mode == 1:
        k(f'''
        v_mul_u32_u24 v6, 3456, v6
        v_add_u32 v6, v6, v4
        s_lshl_b32 s26, s18, 7
        v_add_u32 v6, s26, v6
        s_add_u32 s4, s6, {WS_ACT}
        s_addc_u32 s5, s7, 0
        ''')
        for i in range(4):
            k(f's_waitcnt lgkmcnt({3-i})')
            k(f'v_add_u32 v7, {8*NW*i*3456}, v6')
            k(f'global_store_dwordx4 v7, v[{16+4*i}:{19+4*i}], s[4:5]')
    else:
        k(f'''
        v_mul_u32_u24 v6, 1280, v6
        v_add_u32 v6, v6, v4
        s_lshl_b32 s26, s18, 7
        v_add_u32 v6, s26, v6
        s_add_u32 s4, s6, {WS_X1}
        s_addc_u32 s5, s7, 0
        v_lshlrev_b32 v7, 5, v2
        s_lshl_b32 s26, s18, 8
        v_add_u32 v7, s26, v7
        v_add_u32 v7, {3200*4}, v7
        global_load_dwordx4 v[48:51], v7, s[6:7]
        global_load_dwordx4 v[52:55], v7, s[6:7] offset:16
        ''')
        for i in range(4):
            k(f'v_add_u32 v7, {32*i*1280}, v6')
            k(f'global_load_dwordx4 v[{32+4*i}:{35+4*i}], v7, s[4:5]')
        k('s_waitcnt vmcnt(0) lgkmcnt(0)')
        for i in range(4):
            for p in range(4):
                o = 16+4*i+p; x = 32+4*i+p
                k(f'''
                v_lshlrev_b32 v8, 16, v{o}
                v_and_b32 v9, 0xffff0000, v{o}
                v_mul_f32 v8, v8, v{48+2*p}
                v_mul_f32 v9, v9, v{49+2*p}
                v_cvt_pk_bf16_f32 v8, v8, v9
                v_lshlrev_b32 v10, 16, v8
                v_and_b32 v11, 0xffff0000, v8
                v_lshlrev_b32 v12, 16, v{x}
                v_and_b32 v13, 0xffff0000, v{x}
                v_add_f32 v10, v10, v12
                v_add_f32 v11, v11, v13
                v_cvt_pk_bf16_f32 v{o}, v10, v11
                ''')
            k(f'v_add_u32 v7, {32*i*1280}, v6')
            k(f'global_store_dwordx4 v7, v[{16+4*i}:{19+4*i}], s[14:15]')
    k.put(f'.{name}_done')
    k('s_endpgm')
    return k.text(ACC + NACC), name, (NWG, 1, 1), (64*NW, 1, 1), NST * STG
```

```python
from common import *

def gen_conv():
    k = K('conv_kernel')
    CS = 4160
    HOFF = 8 * CS
    k('''
    s_cmp_ge_u32 s2, 640
    s_cbranch_scc1 .conv_done
    s_load_dwordx2 s[6:7], s[0:1], 136
    v_lshrrev_b32 v1, 6, v0
    s_nop 0
    v_readfirstlane_b32 s23, v1
    s_waitcnt lgkmcnt(0)
    s_lshl_b32 s8, s2, 12
    s_add_u32 s9, s8, %d
    s_add_u32 s10, s8, %d
    v_lshlrev_b32 v1, 4, v0              ; 16t
    v_add_u32 v2, s9, v1
    v_add_u32 v3, s10, v1
    global_load_dwordx4 v[12:15], v2, s[6:7]            ; K[8t..8t+7]
    global_load_dwordx4 v[16:19], v3, s[6:7]            ; h[8t..]
    s_lshl_b32 s11, s2, 2
    v_mov_b32 v4, s11
    global_load_dword v24, v4, s[6:7]                   ; sa[d]
    global_load_dword v25, v4, s[6:7] offset:2560       ; ca[d]
    v_subrev_u32 v2, 16, v2
    v_cmp_ne_u32 vcc, 0, v0
    s_and_saveexec_b64 s[12:13], vcc
    global_load_dwordx4 v[8:11], v2, s[6:7]             ; K[8t-8..8t-1]
    s_mov_b64 exec, s[12:13]
    v_cmp_eq_u32 vcc, 0, v0
    s_waitcnt vmcnt(0)
    v_cndmask_b32 v8, v8, 0, vcc
    v_cndmask_b32 v9, v9, 0, vcc
    v_cndmask_b32 v10, v10, 0, vcc
    v_cndmask_b32 v11, v11, 0, vcc
    s_mov_b32 s14, 0x03020504
    v_add_f32 v25, 1.0, v25
    v_cvt_pk_bf16_f32 v25, v25, v25
    v_lshlrev_b32 v25, 16, v25
    ''' % (WS_K, WS_HT))
    for p in range(4):
        k(f'''
        v_lshlrev_b32 v26, 16, v{16+p}
        v_and_b32 v27, 0xffff0000, v{16+p}
        v_fma_f32 v26, v26, v25, v24
        v_fma_f32 v27, v27, v25, v24
        v_cvt_pk_bf16_f32 v{16+p}, v26, v27
        ''')
    k(f'ds_write_b128 v1, v[16:19] offset:{HOFF + 512}')
    for e in range(8):
        for p in range(4):
            a = 8 + e - 2*p
            if a % 2 == 1:
                w = 8 + (a - 1)//2
                k(f'v_alignbit_b32 v{20+p}, v{w}, v{w}, 16')
            else:
                k(f'v_perm_b32 v{20+p}, v{8+a//2}, v{8+a//2-1}, s14')
        k(f'ds_write_b128 v1, v[20:23] offset:{e*CS + 16}')
        k('s_nop 1')
    k(f'''
    v_mov_b32 v20, 0
    v_mov_b32 v21, 0
    v_mov_b32 v22, 0
    v_mov_b32 v23, 0
    v_cmp_gt_u32 vcc, 8, v0
    s_and_saveexec_b64 s[12:13], vcc
    v_mul_u32_u24 v2, {CS}, v0
    ds_write_b128 v2, v[20:23]
    s_mov_b64 exec, s[12:13]
    v_cmp_gt_u32 vcc, 32, v0
    s_and_saveexec_b64 s[12:13], vcc
    ds_write_b128 v1, v[20:23] offset:{HOFF}
    s_mov_b64 exec, s[12:13]
    s_waitcnt lgkmcnt(0)
    s_barrier
    v_and_b32 v1, 15, v0                 ; r / col
    v_bfe_u32 v2, v0, 4, 2               ; g
    ; A addr = e*CS + (M+8)*2, M = 16*(g/2) - 8*(g%2) + 8*(r/8)
    v_and_b32 v3, 7, v1
    v_mul_u32_u24 v3, {CS}, v3
    v_lshrrev_b32 v4, 1, v2
    v_lshlrev_b32 v4, 5, v4              ; 16*(g/2)*2
    v_and_b32 v5, 1, v2
    v_lshlrev_b32 v5, 4, v5              ; 8*(g%2)*2
    v_sub_u32 v4, v4, v5
    v_lshrrev_b32 v6, 3, v1
    v_lshlrev_b32 v6, 4, v6
    v_add_u32 v4, v4, v6
    v_add_u32 v4, 16, v4
    v_add_u32 v3, v3, v4
    ; B addr tile t: HOFF + (16*(16t + col - g/2) + 8*(g%2) + 256)*2
    v_lshrrev_b32 v4, 1, v2
    v_sub_u32 v4, v1, v4
    v_lshlrev_b32 v4, 5, v4
    v_add_u32 v4, v4, v5
    v_add_u32 v4, {HOFF + 512}, v4       ; tile 0
    s_lshl_b32 s15, s23, 9               ; t=w : 16*16*2*w
    v_add_u32 v6, s15, v4
    s_sub_u32 s16, 7, s23
    s_lshl_b32 s16, s16, 9
    v_add_u32 v7, s16, v4
    v_mov_b32 v40, 0
    v_mov_b32 v41, 0
    v_mov_b32 v42, 0
    v_mov_b32 v43, 0
    v_mov_b32 v44, 0
    v_mov_b32 v45, 0
    v_mov_b32 v46, 0
    v_mov_b32 v47, 0
    s_add_u32 s17, s23, 1
    s_lshl_b32 s17, s17, 3               ; 8(w+1)
    s_sub_u32 s18, 8, s23
    s_lshl_b32 s18, s18, 3               ; 8(8-w)
    s_mov_b32 s19, 0
    ''')
    k.put('.conv_l1')
    k('''
    ds_read_b128 v[8:11], v3
    ds_read_b128 v[12:15], v6
    ds_read_b128 v[16:19], v7
    v_add_u32 v3, 64, v3
    v_subrev_u32 v6, 64, v6
    v_subrev_u32 v7, 64, v7
    s_waitcnt lgkmcnt(0)
    v_mfma_f32_16x16x32_bf16 v[40:43], v[8:11], v[12:15], v[40:43]
    v_mfma_f32_16x16x32_bf16 v[44:47], v[8:11], v[16:19], v[44:47]
    s_add_u32 s19, s19, 1
    s_cmp_lt_u32 s19, s17
    s_cbranch_scc1 .conv_l1
    ''')
    k.put('.conv_l2')
    k('''
    s_cmp_ge_u32 s19, s18
    s_cbranch_scc1 .conv_ep
    ds_read_b128 v[8:11], v3
    ds_read_b128 v[16:19], v7
    v_add_u32 v3, 64, v3
    v_subrev_u32 v7, 64, v7
    s_waitcnt lgkmcnt(0)
    v_mfma_f32_16x16x32_bf16 v[44:47], v[8:11], v[16:19], v[44:47]
    s_add_u32 s19, s19, 1
    s_branch .conv_l2
    ''')
    k.put('.conv_ep')
    k('''
    s_nop 7
    s_nop 7
    v_cvt_pk_bf16_f32 v8, v40, v41
    v_cvt_pk_bf16_f32 v9, v42, v43
    v_cvt_pk_bf16_f32 v10, v44, v45
    v_cvt_pk_bf16_f32 v11, v46, v47
    v_lshlrev_b32 v4, 5, v1              ; 16col*2
    v_lshlrev_b32 v5, 3, v2              ; 4g*2
    v_add_u32 v4, v4, v5
    s_lshl_b32 s8, s2, 12
    s_add_u32 s8, s8, %d
    v_add_u32 v4, s8, v4
    v_add_u32 v5, s15, v4
    v_add_u32 v6, s16, v4
    global_store_dwordx2 v5, v[8:9], s[6:7]
    global_store_dwordx2 v6, v[10:11], s[6:7]
    ''' % WS_YT)
    k.put('.conv_done')
    k('s_endpgm')
    return k.text(48), 'conv_kernel', (640, 1, 1), (256, 1, 1), HOFF + 4608 + 512
```

```python
from common import *

def gen_gemm(mode):
    name = 'gemm1_kernel' if mode == 1 else 'gemm2_kernel'
    k = K(name)
    BM = 256 if mode == 1 else 128
    NW = BM // 32
    BN = 128 if mode == 1 else 64
    NB = BN // 64
    KD = 640 if mode == 1 else 1728
    NIT = KD // 64
    NT = 27 if mode == 1 else 10
    NWG = (2048 // BM) * NT
    NST = 3 if mode == 1 else 4
    ABYT = BM * 128
    BRB = BN * 2
    STG = ABYT + 64 * BRB
    BI = BRB * 64 // (1024 * NW)
    PER = 4 + BI
    arow = KD * 2
    brow = 3456 if mode == 1 else 1280
    ACC = 96
    FR = 48
    if mode == 1:
        REMAP = 's_lshr_b32 s18, s16, 3\n    s_and_b32 s17, s16, 7'
    else:
        REMAP = f's_mov_b32 s19, {(2**32 + 9)//10}\n    s_mul_hi_u32 s17, s16, s19\n    s_mul_i32 s18, s17, 10\n    s_sub_u32 s18, s16, s18'
    k(f'''
    s_cmp_ge_u32 s2, {NWG}
    s_cbranch_scc1 .{name}_done
    s_load_dwordx2 s[6:7], s[0:1], 136
    s_load_dwordx4 s[8:11], s[0:1], 80
    s_load_dwordx2 s[12:13], s[0:1], 96
    s_load_dwordx2 s[14:15], s[0:1], 120
    s_and_b32 s16, s2, 7
    s_mul_i32 s16, s16, {NWG//8}
    s_lshr_b32 s17, s2, 3
    s_add_u32 s16, s16, s17                 ; T
    {REMAP}
    v_lshrrev_b32 v1, 6, v0
    s_nop 0
    v_readfirstlane_b32 s23, v1
    s_waitcnt lgkmcnt(0)
    s_add_u32 s4, s6, {WS_H2 if mode == 1 else WS_ACT}
    s_addc_u32 s5, s7, 0
    ''')
    k(f'''
    v_and_b32 v13, 63, v0
    s_lshr_b32 s24, s23, 1
    s_and_b32 s25, s23, 1
    ; A DMA source: wave w instr j: row = 32w + 8j + l/8 ; chunk = (l%8)^(l/8)
    v_lshrrev_b32 v1, 3, v13
    v_and_b32 v2, 7, v13
    v_lshrrev_b32 v6, 4, v13
    v_xor_b32 v2, v2, v6
    v_xor_b32 v6, 4, v2
    s_mul_i32 s19, s17, {BM}
    s_lshl_b32 s26, s23, 5
    s_add_u32 s19, s19, s26
    v_add_u32 v3, s19, v1
    v_mul_lo_u32 v3, v3, {arow // 64}
    v_lshlrev_b32 v3, 6, v3
    v_lshlrev_b32 v4, 4, v2
    v_lshlrev_b32 v6, 4, v6
    v_add_u32 v6, v3, v6
    v_add_u32 v3, v3, v4
    v_mov_b32 v5, s5
    v_add_co_u32 v4, vcc, s4, v3
    v_addc_co_u32 v5, vcc, 0, v5, vcc
    v_mov_b32 v19, s5
    v_add_co_u32 v18, vcc, s4, v6
    v_addc_co_u32 v19, vcc, 0, v19, vcc
    ''')
    if mode == 1:
        k(f'''
        v_lshrrev_b32 v1, 4, v13
        v_and_b32 v2, 15, v13
        v_lshlrev_b32 v6, 2, v1
        v_xor_b32 v2, v2, v6
        s_lshl_b32 s26, s23, 3
        v_add_u32 v1, s26, v1
        v_mul_u32_u24 v6, {brow}, v1
        v_and_b32 v7, 7, v2
        v_lshlrev_b32 v7, 4, v7
        v_add_u32 v6, v6, v7
        s_lshl_b32 s20, s18, 7
        v_add_u32 v6, s20, v6
        v_cmp_gt_u32 vcc, 8, v2
        v_mov_b32 v8, s10
        v_mov_b32 v9, s8
        s_nop 0
        v_cndmask_b32 v8, v8, v9, vcc
        v_mov_b32 v9, s11
        v_mov_b32 v10, s9
        v_cndmask_b32 v9, v9, v10, vcc
        v_add_co_u32 v8, vcc, v8, v6
        v_addc_co_u32 v9, vcc, 0, v9, vcc
        ''')
    else:
        k(f'''
        ; B: wave w instr j: krow = 16w + 8j + l/8 ; chunk = (l%8) ^ (4*((l/16)&1))
        v_lshrrev_b32 v1, 3, v13
        v_and_b32 v2, 7, v13
        v_bfe_u32 v6, v13, 4, 1
        v_lshlrev_b32 v6, 2, v6
        v_xor_b32 v2, v2, v6
        s_lshl_b32 s26, s23, 4
        v_add_u32 v1, s26, v1
        v_mul_u32_u24 v6, {brow}, v1
        v_lshlrev_b32 v7, 4, v2
        v_add_u32 v6, v6, v7
        s_lshl_b32 s20, s18, 7
        v_add_u32 v6, s20, v6
        v_mov_b32 v9, s13
        v_add_co_u32 v8, vcc, s12, v6
        v_addc_co_u32 v9, vcc, 0, v9, vcc
        ''')
    NACC = 2 * NB * 16
    for i in range(NACC): k(f'v_mov_b32 v{ACC+i}, 0')
    k(f'''
    v_and_b32 v1, 31, v0
    v_bfe_u32 v2, v0, 5, 1
    s_lshl_b32 s26, s24, 13
    v_lshlrev_b32 v6, 7, v1
    v_add_u32 v6, s26, v6
    v_bfe_u32 v7, v1, 1, 3
    ''')
    for kk in range(4):
        k(f'v_add_u32 v12, {2*kk}, v2')
        k('v_xor_b32 v12, v12, v7')
        k('v_lshlrev_b32 v12, 4, v12')
        k(f'v_add_u32 v{40+kk}, v6, v12')
    k(f'''
    v_bfe_u32 v6, v0, 2, 2               ; r
    v_and_b32 v7, 3, v0                  ; c
    v_bfe_u32 v12, v0, 4, 1              ; q
    v_lshlrev_b32 v14, 3, v2
    v_add_u32 v14, v14, v6               ; krow = 8h + r
    v_mul_u32_u24 v14, {BRB}, v14
    v_add_u32 v14, {ABYT}, v14
    v_and_b32 v15, 1, v7
    v_lshlrev_b32 v15, 3, v15
    v_add_u32 v14, v14, v15
    v_lshrrev_b32 v7, 1, v7
    v_lshlrev_b32 v12, 1, v12
    v_add_u32 v7, v7, v12
    s_lshl_b32 s26, s25, 2
    v_add_u32 v7, s26, v7
    ''')
    if mode == 1: k('v_lshlrev_b32 v6, 2, v6')
    else:
        k('v_lshrrev_b32 v6, 1, v6')
        k('v_lshlrev_b32 v6, 2, v6')
    for nb in range(NB):
        k(f'v_add_u32 v12, {8*nb}, v7')
        k('v_xor_b32 v12, v12, v6')
        k('v_lshlrev_b32 v12, 4, v12')
        k(f'v_add_u32 v{44+nb}, v14, v12')
    k('s_lshl_b32 s30, s23, 12')
    k(f's_mul_i32 s31, s23, {1024*BI}')
    k(f's_add_u32 s31, s31, {ABYT}')
    k('s_mov_b32 s28, 0')
    def dma():
        for j in range(4):
            k('s_add_u32 s29, s28, s30')
            k(f's_add_u32 m0, s29, {1024*j}')
            k(f'v_add_co_u32 v14, vcc, {8*j*arow}, v{4 if j%2==0 else 18}')
            k(f'v_addc_co_u32 v15, vcc, 0, v{5 if j%2==0 else 19}, vcc')
            k('global_load_lds_dwordx4 v[14:15], off')
        rows = 4 if mode == 1 else 8
        for j in range(BI):
            k('s_add_u32 s29, s28, s31')
            k(f's_add_u32 m0, s29, {1024*j}')
            k(f'v_add_co_u32 v14, vcc, {rows*j*brow}, v8')
            k('v_addc_co_u32 v15, vcc, 0, v9, vcc')
            k('global_load_lds_dwordx4 v[14:15], off')
        k('v_add_co_u32 v4, vcc, 128, v4')
        k('v_addc_co_u32 v5, vcc, 0, v5, vcc')
        k('v_add_co_u32 v18, vcc, 128, v18')
        k('v_addc_co_u32 v19, vcc, 0, v19, vcc')
        k(f'v_add_co_u32 v8, vcc, {64*brow}, v8')
        k('v_addc_co_u32 v9, vcc, 0, v9, vcc')
        k(f's_add_u32 s28, s28, {STG}')
        k(f's_cmp_eq_u32 s28, {NST*STG}')
        k('s_cselect_b32 s28, 0, s28')
    def fread(s_, kk):
        b = FR + 16*s_
        for mi in range(2):
            k(f'ds_read_b128 v[{b+4*mi}:{b+3+4*mi}], v{40+kk} offset:{4096*mi}')
        for nb in range(NB):
            k(f'ds_read_b64_tr_b16 v[{b+8+4*nb}:{b+9+4*nb}], v{44+nb} offset:{16*kk*BRB}')
            k(f'ds_read_b64_tr_b16 v[{b+10+4*nb}:{b+11+4*nb}], v{44+nb} offset:{(16*kk+4)*BRB}')
    NRD = 2 + 2*NB
    def mfmas(s_):
        b = FR + 16*s_
        for mi in range(2):
            for nb in range(NB):
                a = ACC + 16*(NB*mi+nb)
                k(f'v_mfma_f32_32x32x16_bf16 v[{a}:{a+15}], v[{b+4*mi}:{b+3+4*mi}], v[{b+8+4*nb}:{b+11+4*nb}], v[{a}:{a+15}]')
    for _ in range(NST-1): dma()
    k('s_mov_b32 s27, 0')
    k('s_mov_b32 s21, 0')
    k.put(f'.{name}_loop')
    k(f's_cmp_ge_u32 s27, {NIT-(NST-1)}')
    k(f's_cbranch_scc1 .{name}_tail')
    k(f's_waitcnt vmcnt({(NST-2)*PER})')
    k('s_barrier')
    dma()
    k(f's_branch .{name}_cmp')
    k.put(f'.{name}_tail')
    k('s_waitcnt vmcnt(0)')
    k('s_barrier')
    k.put(f'.{name}_cmp')
    fread(0, 0)
    for kk in range(4):
        if kk < 3:
            fread((kk+1) % 2, kk+1)
            k(f's_waitcnt lgkmcnt({NRD})')
        else:
            k('s_waitcnt lgkmcnt(0)')
        mfmas(kk % 2)
    k(f'''
    s_add_u32 s21, s21, {STG}
    s_mov_b32 s29, {STG}
    s_cmp_eq_u32 s21, {NST*STG}
    s_cselect_b32 s29, {-(NST-1)*STG & 0xffffffff}, s29
    s_cselect_b32 s21, 0, s21
    ''')
    for r in [40, 41, 42, 43] + [44+nb for nb in range(NB)]:
        k(f'v_add_u32 v{r}, s29, v{r}')
    k('s_add_u32 s27, s27, 1')
    k(f's_cmp_lt_u32 s27, {NIT}')
    k(f's_cbranch_scc1 .{name}_loop')
    k('s_barrier')
    k('s_nop 15')
    k('s_nop 3')
    CS = 144
    k(f'''
    s_mul_i32 s26, s24, {64*CS}
    s_lshl_b32 s28, s25, 6
    s_add_u32 s26, s26, s28
    v_mul_u32_u24 v4, {4*CS}, v2
    v_lshlrev_b32 v5, 1, v1
    v_add_u32 v4, v4, v5
    v_add_u32 v4, s26, v4
    ''')
    for mi in range(2):
        for i in range(16):
            off = (32*mi + 8*(i//4) + i % 4) * CS
            if mode == 1:
                g = ACC + 32*mi + i; u = g + 16
                k(f'''
                v_mul_f32 v12, 0xbfb8aa3b, v{g}
                v_exp_f32 v12, v12
                v_mul_f32 v8, v{g}, v{u}
                v_add_f32 v12, 1.0, v12
                v_rcp_f32 v12, v12
                s_nop 0
                v_mul_f32 v8, v8, v12
                v_cvt_pk_bf16_f32 v8, v8, v8
                ds_write_b16 v4, v8 offset:{off}
                ''')
            else:
                a = ACC + 16*mi + i
                k(f'''
                v_cvt_pk_bf16_f32 v8, v{a}, v{a}
                ds_write_b16 v4, v8 offset:{off}
                ''')
    k(f'''
    s_waitcnt lgkmcnt(0)
    s_barrier
    v_lshrrev_b32 v1, 3, v0
    v_and_b32 v2, 7, v0
    v_mul_u32_u24 v5, {CS}, v1
    v_lshlrev_b32 v4, 4, v2
    v_add_u32 v5, v5, v4
    s_mul_i32 s19, s17, {BM}
    v_add_u32 v6, s19, v1
    ''')
    for i in range(4):
        k(f'ds_read_b128 v[{16+4*i}:{19+4*i}], v5 offset:{8*NW*CS*i}')
    if mode == 1:
        k(f'''
        v_mul_u32_u24 v6, 3456, v6
        v_add_u32 v6, v6, v4
        s_lshl_b32 s26, s18, 7
        v_add_u32 v6, s26, v6
        s_add_u32 s4, s6, {WS_ACT}
        s_addc_u32 s5, s7, 0
        ''')
        for i in range(4):
            k(f's_waitcnt lgkmcnt({3-i})')
            k(f'v_add_u32 v7, {8*NW*i*3456}, v6')
            k(f'global_store_dwordx4 v7, v[{16+4*i}:{19+4*i}], s[4:5]')
    else:
        k(f'''
        v_mul_u32_u24 v6, 1280, v6
        v_add_u32 v6, v6, v4
        s_lshl_b32 s26, s18, 7
        v_add_u32 v6, s26, v6
        s_add_u32 s4, s6, {WS_X1}
        s_addc_u32 s5, s7, 0
        v_lshlrev_b32 v7, 5, v2
        s_lshl_b32 s26, s18, 8
        v_add_u32 v7, s26, v7
        v_add_u32 v7, {3200*4}, v7
        global_load_dwordx4 v[48:51], v7, s[6:7]
        global_load_dwordx4 v[52:55], v7, s[6:7] offset:16
        ''')
        for i in range(4):
            k(f'v_add_u32 v7, {32*i*1280}, v6')
            k(f'global_load_dwordx4 v[{32+4*i}:{35+4*i}], v7, s[4:5]')
        k('s_waitcnt vmcnt(0) lgkmcnt(0)')
        for i in range(4):
            for p in range(4):
                o = 16+4*i+p; x = 32+4*i+p
                k(f'''
                v_lshlrev_b32 v8, 16, v{o}
                v_and_b32 v9, 0xffff0000, v{o}
                v_mul_f32 v8, v8, v{48+2*p}
                v_mul_f32 v9, v9, v{49+2*p}
                v_cvt_pk_bf16_f32 v8, v8, v9
                v_lshlrev_b32 v10, 16, v8
                v_and_b32 v11, 0xffff0000, v8
                v_lshlrev_b32 v12, 16, v{x}
                v_and_b32 v13, 0xffff0000, v{x}
                v_add_f32 v10, v10, v12
                v_add_f32 v11, v11, v13
                v_cvt_pk_bf16_f32 v{o}, v10, v11
                ''')
            k(f'v_add_u32 v7, {32*i*1280}, v6')
            k(f'global_store_dwordx4 v7, v[{16+4*i}:{19+4*i}], s[14:15]')
    k.put(f'.{name}_done')
    k('s_endpgm')
    return k.text(ACC + NACC), name, (NWG, 1, 1), (64*NW, 1, 1), NST * STG
```

```python
from common import *

def reduce64(k, regs, tmp, addr):
    for m in (1, 2, 4, 8, 16, 32):
        k(f'v_xor_b32 v{tmp[0]}, {m*4}, v{addr}')
        for i, r in enumerate(regs):
            k(f'ds_bpermute_b32 v{tmp[1+i]}, v{tmp[0]}, v{r}')
        k('s_waitcnt lgkmcnt(0)')
        for i, r in enumerate(regs):
            k(f'v_add_f32 v{r}, v{r}, v{tmp[1+i]}')

def load_row10(k, vdst, voff, sbase, extra=''):
    k(f'global_load_dwordx4 v[{vdst}:{vdst+3}], v{voff}, s[{sbase}:{sbase+1}]{extra}')
    k(f'global_load_dword v{vdst+4}, v{voff}, s[{sbase}:{sbase+1}] offset:16{extra}')

def unpack10(k, src, dst):
    for p in range(5):
        k(f'v_lshlrev_b32 v{dst+2*p}, 16, v{src+p}')
        k(f'v_and_b32 v{dst+2*p+1}, 0xffff0000, v{src+p}')

def load_mod10(k, vdst, voff, sws, idx):
    k(f'v_add_u32 v37, {idx*2560}, v{voff}')
    voff = 37; o = 0
    k(f'global_load_dwordx4 v[{vdst}:{vdst+3}], v{voff}, s[{sws}:{sws+1}] offset:{o}')
    k(f'global_load_dwordx4 v[{vdst+4}:{vdst+7}], v{voff}, s[{sws}:{sws+1}] offset:{o+16}')
    k(f'global_load_dwordx2 v[{vdst+8}:{vdst+9}], v{voff}, s[{sws}:{sws+1}] offset:{o+32}')

def ln_rows(k, X, S, T, LA):
    for r in range(4):
        k(f'v_add_f32 v{S+r}, v{X+10*r}, v{X+10*r+1}')
        for e in range(2, 10):
            k(f'v_add_f32 v{S+r}, v{S+r}, v{X+10*r+e}')
    reduce64(k, [S, S+1, S+2, S+3], T, LA)
    for r in range(4):
        k(f'v_mul_f32 v{S+r}, 0x3acccccd, v{S+r}')
        for e in range(10):
            k(f'v_sub_f32 v{X+10*r+e}, v{X+10*r+e}, v{S+r}')
    for r in range(4):
        k(f'v_mul_f32 v{S+r}, v{X+10*r}, v{X+10*r}')
        for e in range(1, 10):
            k(f'v_fma_f32 v{S+r}, v{X+10*r+e}, v{X+10*r+e}, v{S+r}')
    reduce64(k, [S, S+1, S+2, S+3], T, LA)
    for r in range(4):
        k(f'v_mul_f32 v{S+r}, 0x3acccccd, v{S+r}')
        k(f'v_add_f32 v{S+r}, 0x3727c5ac, v{S+r}')
        k(f'v_rsq_f32 v{S+r}, v{S+r}')
        k('s_nop 0')
        for e in range(10):
            k(f'v_mul_f32 v{X+10*r+e}, v{X+10*r+e}, v{S+r}')

def gen_ln1(k):
    X = 40
    k('''
    s_sub_u32 s2, s2, 670
    s_load_dwordx2 s[4:5], s[0:1], 0
    s_load_dwordx2 s[6:7], s[0:1], 136
    v_lshrrev_b32 v1, 6, v0
    s_nop 0
    v_readfirstlane_b32 s23, v1
    v_and_b32 v1, 63, v0                 ; lane
    v_mul_u32_u24 v2, 20, v1
    s_lshl_b32 s8, s2, 4
    s_lshl_b32 s9, s23, 2
    s_add_u32 s8, s8, s9
    s_mul_i32 s8, s8, 1280
    v_add_u32 v2, s8, v2
    v_lshlrev_b32 v3, 1, v2              ; unused
    v_mul_u32_u24 v4, 40, v1
    v_lshlrev_b32 v5, 2, v1              ; lane*4
    s_waitcnt lgkmcnt(0)
    ''')
    for r in range(4):
        load_row10(k, 8 + 6*r, 2, 4, f'' )
        if r < 3: k('v_add_u32 v2, 1280, v2')
    k('s_waitcnt vmcnt(0)')
    for r in range(4):
        unpack10(k, 8 + 6*r, X + 10*r)
    ln_rows(k, X, 28, [32, 33, 34, 35, 36], 5)
    k('''
    v_mul_u32_u24 v6, 320, v1
    s_lshl_b32 s9, s23, 3
    v_add_u32 v6, s9, v6
    ''')
    for e in range(10):
        k(f'v_cvt_pk_bf16_f32 v8, v{X+e}, v{X+10+e}')
        k(f'v_cvt_pk_bf16_f32 v9, v{X+20+e}, v{X+30+e}')
        k(f'ds_write_b64 v6, v[8:9] offset:{32*e}')
    k('''
    s_waitcnt lgkmcnt(0)
    s_barrier
    s_lshl_b32 s8, s2, 5
    s_add_u32 s8, s8, %d
    ''' % WS_HT)
    for it in range(3):
        if it == 2:
            k('''
            v_cmp_gt_u32 vcc, 128, v0
            s_and_saveexec_b64 s[10:11], vcc
            s_cbranch_execz .ln1_done
            ''')
        k(f'''
        v_add_u32 v6, {256*it}, v0
        v_lshlrev_b32 v7, 5, v6
        ds_read_b128 v[8:11], v7
        ds_read_b128 v[12:15], v7 offset:16
        v_lshlrev_b32 v7, 12, v6
        v_add_u32 v7, s8, v7
        s_waitcnt lgkmcnt(0)
        global_store_dwordx4 v7, v[8:11], s[6:7]
        global_store_dwordx4 v7, v[12:15], s[6:7] offset:16
        ''')
    k.put('.ln1_done')
    k('s_endpgm')

def gen_ln2():
    k = K('ln2_kernel')
    X = 40
    k('''
    s_cmp_ge_u32 s2, 128
    s_cbranch_scc1 .ln2_done
    s_load_dwordx2 s[4:5], s[0:1], 0
    s_load_dwordx2 s[6:7], s[0:1], 136
    v_lshrrev_b32 v1, 6, v0
    s_nop 0
    v_readfirstlane_b32 s23, v1
    s_waitcnt lgkmcnt(0)
    s_lshl_b32 s8, s2, 5
    s_add_u32 s8, s8, %d
    ''' % WS_YT)
    for it in range(3):
        if it == 2:
            k('''
            v_cmp_gt_u32 vcc, 128, v0
            s_and_saveexec_b64 s[10:11], vcc
            ''')
        k(f'''
        v_add_u32 v6, {256*it}, v0
        v_lshlrev_b32 v7, 12, v6
        v_add_u32 v7, s8, v7
        global_load_dwordx4 v[8:11], v7, s[6:7]
        global_load_dwordx4 v[12:15], v7, s[6:7] offset:16
        v_lshlrev_b32 v7, 5, v6
        s_waitcnt vmcnt(0)
        ds_write_b128 v7, v[8:11]
        ds_write_b128 v7, v[12:15] offset:16
        ''')
    k('''
    s_mov_b64 exec, -1
    v_and_b32 v1, 63, v0                 ; lane
    v_mul_u32_u24 v2, 20, v1
    s_lshl_b32 s8, s2, 4
    s_lshl_b32 s9, s23, 2
    s_add_u32 s8, s8, s9
    s_mul_i32 s8, s8, 1280
    v_add_u32 v2, s8, v2
    v_mul_u32_u24 v4, 40, v1
    v_lshlrev_b32 v5, 2, v1
    v_mov_b32 v3, v2
    ''')
    for r in range(4):
        load_row10(k, 8 + 6*r, 3, 4)
        if r < 3: k('v_add_u32 v3, 1280, v3')
    load_mod10(k, 80, 4, 6, 2)
    load_mod10(k, 90, 4, 6, 3)
    load_mod10(k, 100, 4, 6, 4)
    k('''
    s_waitcnt lgkmcnt(0)
    s_barrier
    v_mul_u32_u24 v6, 320, v1
    s_lshl_b32 s9, s23, 3
    v_add_u32 v6, s9, v6
    ''')
    for e in range(10):
        k(f'ds_read_b64 v[{110+2*e}:{111+2*e}], v6 offset:{32*e}')
    k('s_waitcnt vmcnt(0) lgkmcnt(0)')
    for r in range(4):
        unpack10(k, 8 + 6*r, X + 10*r)
    for e in range(10):
        for r in range(4):
            src = 110 + 2*e + r//2
            if r % 2 == 0: k(f'v_lshlrev_b32 v6, 16, v{src}')
            else: k(f'v_and_b32 v6, 0xffff0000, v{src}')
            k(f'v_mul_f32 v6, v6, v{80+e}')
            k(f'v_cvt_pk_bf16_f32 v6, v6, v6')
            k(f'v_lshlrev_b32 v6, 16, v6')
            k(f'v_add_f32 v6, v6, v{X+10*r+e}')
            k(f'v_cvt_pk_bf16_f32 v6, v6, v6')
            k(f'v_lshlrev_b32 v{X+10*r+e}, 16, v6')
    k('s_add_u32 s12, s6, %d' % WS_X1)
    k('s_addc_u32 s13, s7, 0')
    k('s_add_u32 s14, s6, %d' % WS_H2)
    k('s_addc_u32 s15, s7, 0')
    def store_rows(sb):
        k('v_mov_b32 v3, v2')
        for r in range(4):
            for p in range(5):
                k(f'v_cvt_pk_bf16_f32 v{8+p}, v{X+10*r+2*p}, v{X+10*r+2*p+1}')
            k(f'global_store_dwordx4 v3, v[8:11], s[{sb}:{sb+1}]')
            k(f'global_store_dword v3, v12, s[{sb}:{sb+1}] offset:16')
            k('v_add_u32 v3, 1280, v3')
            k('s_nop 1')
    store_rows(12)
    ln_rows(k, X, 28, [32, 33, 34, 35, 36], 5)
    for e in range(0, 10, 2):
        k(f'v_add_f32 v{100+e}, 1.0, v{100+e}')
        k(f'v_add_f32 v{101+e}, 1.0, v{101+e}')
        k(f'v_cvt_pk_bf16_f32 v6, v{100+e}, v{101+e}')
        k(f'v_lshlrev_b32 v{100+e}, 16, v6')
        k(f'v_and_b32 v{101+e}, 0xffff0000, v6')
    for r in range(4):
        for e in range(10):
            k(f'v_fma_f32 v{X+10*r+e}, v{X+10*r+e}, v{100+e}, v{90+e}')
    store_rows(14)
    k.put('.ln2_done')
    k('s_endpgm')
    return k.text(132), 'ln2_kernel', (128, 1, 1), (256, 1, 1), 20480
```

```python
from common import *
from k_ln import gen_ln1

def gen_prep():
    k = K('prep_kernel')
    XB = 2048
    KP = 2048
    k('''
    s_cmp_ge_u32 s2, 798
    s_cbranch_scc1 .prep_done
    s_cmp_ge_u32 s2, 670
    s_cbranch_scc1 .prep_ln1
    s_cmp_ge_u32 s2, 640
    s_cbranch_scc1 .prep_mod
    s_load_dwordx4 s[4:7], s[0:1], 8
    s_load_dwordx4 s[8:11], s[0:1], 24
    s_load_dwordx4 s[12:15], s[0:1], 40
    s_load_dwordx4 s[16:19], s[0:1], 56
    s_load_dwordx2 s[20:21], s[0:1], 136
    v_lshrrev_b32 v10, 6, v0
    s_nop 0
    v_readfirstlane_b32 s23, v10          ; wave id
    s_waitcnt lgkmcnt(0)
    s_cmp_ge_u32 s23, 2
    s_cbranch_scc1 .prep_p_skip
    v_lshlrev_b32 v1, 1, v0
    s_lshl_b32 s3, s2, 8
    v_add_u32 v1, s3, v1
    global_load_ushort v2, v1, s[4:5]
    global_load_ushort v3, v1, s[6:7]
    global_load_ushort v4, v1, s[8:9]
    global_load_ushort v5, v1, s[10:11]
    global_load_ushort v6, v1, s[12:13]
    global_load_ushort v7, v1, s[14:15]
    s_lshl_b32 s22, s2, 1
    v_mov_b32 v8, s22
    global_load_ushort v9, v8, s[16:17]
    s_waitcnt vmcnt(0)
    v_lshlrev_b32 v2, 16, v2
    v_lshlrev_b32 v3, 16, v3
    v_lshlrev_b32 v4, 16, v4
    v_lshlrev_b32 v5, 16, v5
    v_lshlrev_b32 v6, 16, v6
    v_lshlrev_b32 v7, 16, v7
    v_lshlrev_b32 v9, 16, v9
    v_mul_f32 v9, 0x%x, v9
    v_exp_f32 v9, v9
    s_nop 0
    v_cvt_pk_bf16_f32 v9, v9, v9
    v_lshlrev_b32 v9, 16, v9              ; dt (bf16 rounded)
    v_mul_f32 v2, v2, v9                  ; ar
    v_mul_f32 v3, v3, v9                  ; ai
    v_mul_f32 v4, v4, v9                  ; dBr
    v_mul_f32 v5, v5, v9                  ; dBi
    v_mul_f32 v14, v6, v4
    v_fma_f32 v14, -v7, v5, v14           ; CBr
    v_mul_f32 v15, v6, v5
    v_fma_f32 v15, v7, v4, v15            ; CBi
    v_mul_f32 v12, 0x%x, v2
    v_mul_f32 v13, 0x%x, v3
    v_lshlrev_b32 v1, 4, v0
    ds_write_b128 v1, v[12:15]
    .prep_p_skip:
    s_waitcnt lgkmcnt(0)
    s_barrier
    ''' % (LOG2E, LOG2E, INV2PI))
    k('''
    s_lshl_b32 s24, 1, s23               ; stride
    s_lshl_b32 s25, 128, s23
    s_cmp_eq_u32 s23, 0
    s_cselect_b32 s25, 0, s25            ; base
    v_and_b32 v1, 15, v0                 ; i / j
    v_bfe_u32 v2, v0, 4, 2               ; g
    v_lshlrev_b32 v3, s23, v1
    v_cvt_f32_u32 v4, v3                 ; lj = s*j
    v_lshlrev_b32 v3, 4, v3
    v_add_u32 v3, s25, v3
    v_cvt_f32_u32 v5, v3
    v_lshlrev_b32 v6, 6, v2              ; P addr = (4g)*16
    v_mov_b32 v24, 0
    v_mov_b32 v25, 0
    v_mov_b32 v26, 0
    v_mov_b32 v27, 0
    s_mov_b32 s28, 0
    ''')
    k.put('.prep_loop')
    for q in range(4):
        k(f'ds_read_b128 v[{32+4*q}:{35+4*q}], v6 offset:{16*q}')
    k('v_add_u32 v6, 256, v6')
    k('s_waitcnt lgkmcnt(0)')
    for q in range(4):
        pb = 32 + 4*q
        k(f'''
        v_mul_f32 v8, v{pb}, v4
        v_mul_f32 v9, v{pb+1}, v4
        v_mul_f32 v10, v{pb}, v5
        v_mul_f32 v11, v{pb+1}, v5
        v_exp_f32 v8, v8
        v_fract_f32 v9, v9
        v_exp_f32 v10, v10
        v_fract_f32 v11, v11
        v_sin_f32 v12, v9
        v_cos_f32 v13, v9
        v_sin_f32 v14, v11
        v_cos_f32 v15, v11
        v_mul_f32 v{48+2*q}, v8, v13
        v_mul_f32 v{49+2*q}, v8, v12
        v_mul_f32 v16, v{pb+2}, v15
        v_fma_f32 v16, -v{pb+3}, v14, v16
        v_mul_f32 v17, v{pb+2}, v14
        v_fma_f32 v17, v{pb+3}, v15, v17
        v_mul_f32 v{56+2*q}, v10, v16
        v_mul_f32 v{57+2*q}, -v10, v17
        ''')
    for src, hi in ((48, 64), (56, 72)):
        for q in range(4):
            k(f'''
            v_cvt_pk_bf16_f32 v{hi+q}, v{src+2*q}, v{src+2*q+1}
            v_lshlrev_b32 v8, 16, v{hi+q}
            v_and_b32 v9, 0xffff0000, v{hi+q}
            v_sub_f32 v8, v{src+2*q}, v8
            v_sub_f32 v9, v{src+2*q+1}, v9
            v_cvt_pk_bf16_f32 v{hi+4+q}, v8, v9
            ''')
    k('''
    s_nop 1
    v_mfma_f32_16x16x32_bf16 v[24:27], v[72:75], v[64:67], v[24:27]
    v_mfma_f32_16x16x32_bf16 v[24:27], v[72:75], v[68:71], v[24:27]
    v_mfma_f32_16x16x32_bf16 v[24:27], v[76:79], v[64:67], v[24:27]
    s_add_u32 s28, s28, 1
    s_cmp_lt_u32 s28, 8
    s_cbranch_scc1 .prep_loop
    s_nop 7
    s_nop 3
    ; write Kint: pos = segoff + 16*(4g+r) + j ; valid rows: w0:16, w1,w2: 8, w3: 9
    s_lshl_b32 s28, s23, 7
    s_add_u32 s29, s28, 128
    s_cmp_eq_u32 s23, 0
    s_cselect_b32 s28, 0, s29
    s_cselect_b32 s29, 16, 8
    s_cmp_eq_u32 s23, 3
    s_cselect_b32 s29, 9, s29            ; nrows
    v_lshlrev_b32 v8, 6, v2
    v_add_u32 v8, v8, v1
    v_add_u32 v8, s28, v8
    v_lshlrev_b32 v8, 2, v8
    v_add_u32 v8, %d, v8
    v_lshlrev_b32 v9, 2, v2              ; 4g
    ''' % KP)
    for r in range(4):
        k(f'''
        v_add_u32 v10, {r}, v9
        v_cmp_gt_u32 vcc, s29, v10
        s_and_saveexec_b64 s[30:31], vcc
        ds_write_b32 v8, v{24+r} offset:{64*r}
        s_mov_b64 exec, s[30:31]
        ''')
    k('''
    .prep_kw:
    s_lshl_b32 s22, s2, 1
    v_mov_b32 v1, s22
    global_load_ushort v2, v1, s[18:19]   ; Dskip[d]
    s_waitcnt lgkmcnt(0)
    s_barrier
    v_lshlrev_b32 v3, 3, v0              ; l0 = 8t
    ''')
    for q in range(8):
        k(f'''
        v_add_u32 v4, {q}, v3
        v_cvt_f32_u32 v4, v4
        v_cvt_pk_bf16_f32 v4, v4, v4
        v_lshlrev_b32 v4, 16, v4
        v_cvt_u32_f32 v5, v4                 ; lb
        v_lshrrev_b32 v6, 23, v4
        v_subrev_u32 v6, 134, v6
        v_max_i32 v6, 0, v6                  ; sh
        v_lshrrev_b32 v5, v6, v5
        v_lshlrev_b32 v6, 7, v6
        v_add_u32 v5, v5, v6                 ; pos
        v_lshlrev_b32 v5, 2, v5
        v_add_u32 v5, {KP}, v5
        ds_read_b32 v{32+q}, v5
        ''')
    k('s_waitcnt vmcnt(0) lgkmcnt(0)')
    k('''
    v_lshlrev_b32 v2, 16, v2
    v_cmp_eq_u32 vcc, 0, v0
    s_nop 1
    v_cndmask_b32 v2, 0, v2, vcc
    v_add_f32 v32, v32, v2
    v_cvt_pk_bf16_f32 v8, v32, v33
    v_cvt_pk_bf16_f32 v9, v34, v35
    v_cvt_pk_bf16_f32 v10, v36, v37
    v_cvt_pk_bf16_f32 v11, v38, v39
    s_lshl_b32 s22, s2, 12
    s_add_u32 s22, s22, %d
    v_lshlrev_b32 v1, 4, v0
    v_add_u32 v1, s22, v1
    global_store_dwordx4 v1, v[8:11], s[20:21]
    s_branch .prep_done
    ''' % WS_K)
    k.put('.prep_mod')
    k('''
    s_load_dwordx4 s[4:7], s[0:1], 104   ; c, w_mod
    s_load_dwordx2 s[20:21], s[0:1], 136
    v_lshrrev_b32 v10, 6, v0
    s_nop 0
    v_readfirstlane_b32 s23, v10
    s_sub_u32 s22, s2, 640               ; g
    s_waitcnt lgkmcnt(0)
    ''')
    for it in range(2):
        k(f'''
        v_add_u32 v11, {256*it}, v0
        v_cmp_gt_u32 vcc, 320, v11
        s_and_saveexec_b64 s[30:31], vcc
        v_lshlrev_b32 v1, 2, v11
        global_load_dword v2, v1, s[4:5]
        s_waitcnt vmcnt(0)
        v_lshlrev_b32 v3, 16, v2
        v_and_b32 v4, 0xffff0000, v2
        ''')
        for v in (3, 4):
            k(f'''
            v_mul_f32 v5, 0xbfb8aa3b, v{v}
            v_exp_f32 v5, v5
            s_nop 0
            v_add_f32 v5, 1.0, v5
            v_rcp_f32 v5, v5
            s_nop 0
            v_mul_f32 v{v}, v{v}, v5
            ''')
        k('''
        v_cvt_pk_bf16_f32 v5, v3, v4
        v_lshlrev_b32 v6, 16, v5
        v_and_b32 v7, 0xffff0000, v5
        v_lshlrev_b32 v1, 3, v11
        ds_write_b64 v1, v[6:7]
        s_mov_b64 exec, s[30:31]
        ''')
    k('''
    s_waitcnt lgkmcnt(0)
    s_barrier
    v_and_b32 v1, 63, v0
    s_lshl_b32 s24, s22, 8               ; g*256 bytes
    v_lshlrev_b32 v2, 2, v1
    v_add_u32 v2, s24, v2
    s_mul_i32 s25, s23, 160*7680
    v_add_u32 v2, s25, v2
    s_mul_i32 s26, s23, 640
    v_mov_b32 v3, s26
    v_mov_b32 v40, 0
    v_mov_b32 v41, 0
    s_mov_b32 s27, 0
    ''')
    k.put('.prep_mloop')
    for j in range(40):
        k(f'global_load_dword v{60+j}, v2, s[6:7]')
        k('v_add_u32 v2, 7680, v2')
    for j in range(10):
        k(f'ds_read_b128 v[{100+4*j}:{103+4*j}], v3 offset:{16*j}')
    k('v_add_u32 v3, 160, v3')
    for j in range(40):
        k(f's_waitcnt vmcnt({39-j}) lgkmcnt(0)')
        k(f'v_lshlrev_b32 v4, 16, v{60+j}')
        k(f'v_and_b32 v5, 0xffff0000, v{60+j}')
        k(f'v_fma_f32 v40, v4, v{100+j}, v40')
        k(f'v_fma_f32 v41, v5, v{100+j}, v41')
    k('''
    s_add_u32 s27, s27, 1
    s_cmp_lt_u32 s27, 4
    s_cbranch_scc1 .prep_mloop
    s_lshl_b32 s24, s23, 9
    v_lshlrev_b32 v1, 3, v1
    v_add_u32 v1, s24, v1
    ds_write_b64 v1, v[40:41] offset:4096
    s_waitcnt lgkmcnt(0)
    s_barrier
    v_cmp_gt_u32 vcc, 128, v0
    s_and_saveexec_b64 s[30:31], vcc
    s_cbranch_execz .prep_done
    v_lshlrev_b32 v1, 2, v0
    ds_read_b32 v2, v1 offset:4096
    ds_read_b32 v3, v1 offset:4608
    ds_read_b32 v4, v1 offset:5120
    ds_read_b32 v5, v1 offset:5632
    s_waitcnt lgkmcnt(0)
    v_add_f32 v2, v2, v3
    v_add_f32 v4, v4, v5
    v_add_f32 v2, v2, v4
    v_cvt_pk_bf16_f32 v2, v2, v2
    v_lshlrev_b32 v2, 16, v2
    s_lshl_b32 s24, s22, 9
    v_add_u32 v1, s24, v1
    global_store_dword v1, v2, s[20:21]
    ''')
    k.put('.prep_done')
    k('s_endpgm')
    k.put('.prep_ln1')
    gen_ln1(k)
    return k.text(148), 'prep_kernel', (798, 1, 1), (256, 1, 1), 20480
```
